```python
import torch

def _softmax(x, axis=-1):
    return torch.softmax(x, dim=axis)
def _gelu(x):
    return torch.nn.functional.gelu(x, approximate="tanh")
def _silu(x):
    return torch.nn.functional.silu(x)
def _sigmoid(x):
    return torch.sigmoid(x)
def _layernorm(x, axis=-1, eps=1e-5):
    m = x.mean(dim=axis, keepdim=True)
    v = x.var(dim=axis, keepdim=True, unbiased=False)
    return (x - m) / torch.sqrt(v + eps)
def _scatter_add(tgt, idx, src, axis=0):
    return tgt.clone().index_add_(axis, idx, src)
def _segment_sum(src, seg, n):
    out = torch.zeros((n,) + src.shape[1:], dtype=src.dtype)
    return out.index_add_(0, seg, src)
def _pad(x, pw):
    flat = tuple(v for pair in reversed(pw) for v in pair)
    return torch.nn.functional.pad(x, flat)

kernel_name = 'gated_mix__mha_block_cached__swiglu_ffn__decode'

def setup_inputs():

    _w = (lambda a: (lambda t: t.to(torch.bfloat16) if t.is_floating_point() else t)(torch.as_tensor(a)))
    def _A_setup():
        B, Sq, D = 4, 1, 512
        H, Sk, Dh = 32, 8192, 128
        return {
            "x": _w((lambda *s: torch.randn(*s, dtype=torch.bfloat16) * 0.05)(B, Sq, D)),
            "k_cache": _w((lambda *s: torch.randn(*s, dtype=torch.bfloat16) * 6.4)(B, H, Sk, Dh)),
            "v_cache": _w((lambda *s: torch.randn(*s, dtype=torch.bfloat16) * 1.6)(B, H, Sk, Dh)),
            "wq": _w((lambda *s: torch.randn(*s, dtype=torch.bfloat16) * 6.4)(D, H * Dh) * (D ** -0.5)),
            "wo": _w((lambda *s: torch.randn(*s, dtype=torch.bfloat16) * 1.6)(H * Dh, D) * ((H * Dh) ** -0.5)),
        }
    _A_in = _A_setup()

    def _B_setup():
        B, S, D, F = 4, 1, 512, 1376
        return {
            "x": _w((lambda *s: torch.randn(*s, dtype=torch.bfloat16) * 0.05)(B, S, D)),
            "w_gate": _w((lambda *s: torch.randn(*s, dtype=torch.bfloat16) * 0.2)(D, F)),
            "w_up": _w((lambda *s: torch.randn(*s, dtype=torch.bfloat16) * 0.2)(D, F)),
            "w_down": _w((lambda *s: torch.randn(*s, dtype=torch.bfloat16) * 0.2)(F, D)),
        }
    _B_in = _B_setup()

    return {
        "A_x": _A_in["x"],
        "A_k_cache": _A_in["k_cache"],
        "A_v_cache": _A_in["v_cache"],
        "A_wq": _A_in["wq"],
        "A_wo": _A_in["wo"],
        "B_x": _B_in["x"],
        "B_w_gate": _B_in["w_gate"],
        "B_w_up": _B_in["w_up"],
        "B_w_down": _B_in["w_down"],
        "gate_w": _w((lambda *s: torch.randn(*s, dtype=torch.bfloat16) * 0.05)(512) * 16.0),
    }

def reference(A_x, A_k_cache, A_v_cache, A_wq, A_wo, B_x, B_w_gate, B_w_up, B_w_down, gate_w):
    def _A_ref(x, k_cache, v_cache, wq, wo):
        B, Sq, D = x.shape
        H, Dh = 32, 128
        q = (lambda x, *d: x.permute(*d))((x @ wq).reshape(B, Sq, H, Dh), 0, 2, 1, 3)
        scores = torch.einsum("bhqd,bhkd->bhqk", q, k_cache) * (Dh ** -0.5)
        p = _softmax(scores, axis=-1)
        o = torch.einsum("bhqk,bhkd->bhqd", p, v_cache)
        return (lambda x, *d: x.permute(*d))(o, 0, 2, 1, 3).reshape(B, Sq, H * Dh) @ wo

    def _B_ref(x, w_gate, w_up, w_down):
        g = _silu(x @ w_gate)
        u = x @ w_up
        return (g * u) @ w_down

    x = A_x
    g = _sigmoid((x * gate_w).sum(-1, keepdims=True))
    a = _A_ref(x, A_k_cache, A_v_cache, A_wq, A_wo)
    b = _B_ref(x, B_w_gate, B_w_up, B_w_down)
    return g * a + (1 - g) * b
```

```python
import sys, math, struct
NAME = "gated_mix__mha_block_cached__swiglu_ffn__decode"

def f2u(x): return struct.unpack("<I", struct.pack("<f", x))[0]
LOG2E = 1.4426950408889634
SCALE = 128 ** -0.5

HEADER = open("cdna_kernels/" + NAME + ".s.ref").read().split("; Override launch geometry")[0]

def gen(ZW=3, D=5, D0=5, mimic=1, stamp=0, wflags="", spin=1 << 18, sleep=2):
    L = []
    def A(s): L.append("    " + s)
    def LB(s): L.append(s + ":")
    def nop(n):
        if n > 0: A(f"s_nop {n-1}")
    ZB = ZW * 32768
    QP = ZB
    ST = QP + 4096
    ML = ST + 8192
    OB = ML + 64
    FH = OB + 1024
    GB = FH + 256
    LDS = GB + 512
    LDS = max(LDS, 84 * 1024)
    NT = 64 - ZW
    vLane, vOff = 0, 1
    vMask = [2, 3, 4, 5]; vQ = [6, 7, 8, 9]
    vMc, vL = 10, 11
    vA = [12, 13, 14, 15]; vR0, vR1, vS, vX, vPP, vT0, vT1, vT2 = 16, 17, 18, 19, 20, 21, 22, 23
    vD = 24; vB = [28, 32]; vRing = 36
    vW = 68
    vSt = 100
    vU = 101
    vSpare = 96
    vBig = 128
    sH, sB, sSp, sA = 52, 53, 54, 55
    sOff, sCnt, sT0, sT1, sT2, sC, sSc = 56, 57, 58, 59, 60, 61, 62
    sSelLo, sSelHi = 63, 64
    DPPF = "row_mask:0xf bank_mask:0xf"

    stamp_n = [0]
    def STAMP(idx):
        if not stamp: return
        A("s_memrealtime s[70:71]")
        A("s_waitcnt lgkmcnt(0)")
        A(f"v_writelane_b32 v{vU+6}, s70, {idx}")

    L.append(HEADER.rstrip("\n"))
    L.append(f"; @launch grid=(256,1,1) block=(512,1,1) lds={LDS}")
    L.append('.amdgcn_target "amdgcn-amd-amdhsa--gfx950"')
    L.append(".text"); L.append(f".globl {NAME}_kernel"); L.append(".p2align 8"); L.append(f".type {NAME}_kernel,@function")
    LB(f"{NAME}_kernel")
    A("s_cmp_ge_u32 s2, 256"); A("s_cbranch_scc1 L_end")
    A("s_load_dwordx16 s[4:19], s[0:1], 0")
    A("s_load_dwordx8 s[20:27], s[0:1], 64")
    A("s_load_dwordx2 s[28:29], s[0:1], 96")
    A("v_lshrrev_b32 v1, 6, v0")
    A("v_and_b32 v0, 63, v0")
    A("v_readfirstlane_b32 s3, v1")
    if stamp:
        A(f"v_mov_b32 v{vU+6}, 0")
    A(f"s_and_b32 s{sH}, s2, 7"); A(f"s_lshr_b32 s{sT0}, s2, 6"); A(f"s_lshl_b32 s{sT0}, s{sT0}, 3"); A(f"s_or_b32 s{sH}, s{sH}, s{sT0}")
    A(f"s_bfe_u32 s{sB}, s2, 0x20004")
    A(f"s_bfe_u32 s{sSp}, s2, 0x10003")
    A(f"s_and_b32 s{sA}, s3, 3")
    A("s_cmp_ge_u32 s3, 4"); A("s_cbranch_scc1 L_aux")

    def make_masks():
        A(f"v_and_b32 v{vT0}, 1, v{vLane}")
        A(f"v_lshlrev_b32 v{vT0}, 4, v{vT0}")
        A(f"v_mov_b32 v{vT1}, 0xffff")
        A(f"v_lshlrev_b32 v{vT1}, v{vT0}, v{vT1}")
        A(f"v_bfe_u32 v{vT0}, v{vLane}, 1, 3")
        for r in range(4):
            A(f"v_cmp_eq_u32 vcc, {r}, v{vT0}"); nop(2)
            A(f"v_cndmask_b32 v{vMask[r]}, 0, v{vT1}, vcc")
        A(f"v_lshrrev_b32 v{vT0}, 4, v{vLane}"); A(f"v_lshlrev_b32 v{vT0}, 8, v{vT0}")
        A(f"v_and_b32 v{vT1}, 15, v{vLane}"); A(f"v_lshl_add_u32 v{vSt}, v{vT1}, 2, v{vT0}")
    def init_state():
        A(f"v_mov_b32 v{vMc}, 0xff7fffff"); A(f"v_mov_b32 v{vL}, 0")
        for r in range(4): A(f"v_mov_b32 v{vD+r}, 0")
        if mimic:
            A(f"s_mov_b32 s{sC}, {f2u(LOG2E):#x}"); A(f"s_mov_b32 s{sSc}, {f2u(SCALE):#x}")
        else:
            A(f"s_mov_b32 s{sC}, {f2u(LOG2E*SCALE):#x}")
    def read_q():
        A(f"v_and_b32 v{vT0}, 15, v{vLane}"); A(f"v_lshlrev_b32 v{vT0}, 6, v{vT0}")
        A(f"v_add_u32 v{vT0}, {QP}, v{vT0}")
        for a in range(4):
            A(f"ds_read_b128 v[{vW+a*8}:{vW+a*8+3}], v{vT0} offset:{a*1024}")
            A(f"ds_read_b128 v[{vW+a*8+4}:{vW+a*8+7}], v{vT0} offset:{a*1024+16}")
        A("s_waitcnt lgkmcnt(4)")
        for j in range(8): A(f"v_add_f32 v{vW+j}, v{vW+j}, v{vW+8+j}")
        A("s_waitcnt lgkmcnt(0)")
        for j in range(8): A(f"v_add_f32 v{vW+16+j}, v{vW+16+j}, v{vW+24+j}")
        for j in range(8): A(f"v_add_f32 v{vW+j}, v{vW+j}, v{vW+16+j}")
        for r in range(4): A(f"v_cvt_pk_bf16_f32 v{vQ[r]}, v{vW+2*r}, v{vW+2*r+1}")
    QD = [0, 2, 1, 3]
    def build_B(i):
        b = vB[i & 1]
        for r in range(4):
            A(f"v_and_b32_dpp v{b+r}, v{vPP}, v{vMask[r]} row_newbcast:{4*QD[i]} {DPPF}")
    def tile(pre, tag):
        for i in range(4):
            pre(i)
            k = vRing + 4 * i
            A(f"v_dot2_f32_bf16 v{vA[i]}, v{k}, v{vQ[0]}, 0")
            for r in range(1, 4): A(f"v_dot2_f32_bf16 v{vA[i]}, v{k+r}, v{vQ[r]}, v{vA[i]}")
            if i == 1:
                A(f"v_add_f32_dpp v{vR0}, v{vA[0]}, v{vA[0]} row_ror:8 row_mask:0xf bank_mask:0x3")
            if i == 2:
                A(f"v_add_f32_dpp v{vR0}, v{vA[1]}, v{vA[1]} row_ror:8 row_mask:0xf bank_mask:0xc")
            if i == 3:
                A(f"v_add_f32_dpp v{vR1}, v{vA[2]}, v{vA[2]} row_ror:8 row_mask:0xf bank_mask:0x3")
                A(f"v_add_f32_dpp v{vS}, v{vR0}, v{vR0} row_half_mirror row_mask:0xf bank_mask:0x5")
                nop(1)
                A(f"v_add_f32_dpp v{vR1}, v{vA[3]}, v{vA[3]} row_ror:8 row_mask:0xf bank_mask:0xc")
                nop(2)
                A(f"v_add_f32_dpp v{vS}, v{vR1}, v{vR1} row_half_mirror row_mask:0xf bank_mask:0xa")
                nop(2)
                A(f"v_add_f32_dpp v{vS}, v{vS}, v{vS} quad_perm:[1,0,3,2] {DPPF}")
                nop(2)
                A(f"v_add_f32_dpp v{vS}, v{vS}, v{vS} quad_perm:[2,3,0,1] {DPPF}")
                if mimic:
                    A(f"v_cvt_pk_bf16_f32 v{vS}, 0, v{vS}")
                    A(f"v_mul_f32 v{vS}, s{sSc}, v{vS}")
                    A(f"v_cvt_pk_bf16_f32 v{vS}, 0, v{vS}")
                A(f"v_fma_f32 v{vX}, v{vS}, s{sC}, -v{vMc}")
                A(f"v_cmp_lt_f32 vcc, 0, v{vX}")
                A(f"s_cbranch_vccnz L_rare_{tag}")
                LB(f"L_back_{tag}")
                A(f"v_exp_f32 v{vX}, v{vX}")
                nop(1)
                A(f"v_cvt_pk_bf16_f32 v{vPP}, v{vX}, v{vX}")
                A(f"v_add_f32 v{vL}, v{vL}, v{vX}")
                nop(1)
                build_B(0)
        for i in range(4):
            pre(4 + i)
            v = vRing + 16 + 4 * i
            b = vB[i & 1]
            A(f"v_mfma_f32_16x16x32_bf16 v[{vD}:{vD+3}], v[{v}:{v+3}], v[{b}:{b+3}], v[{vD}:{vD+3}]")
            if i < 3: build_B(i + 1)
    def rare(tag):
        LB(f"L_rare_{tag}")
        A(f"v_mul_f32 v{vT0}, s{sC}, v{vS}"); nop(2)
        A(f"v_max_f32_dpp v{vT0}, v{vT0}, v{vT0} row_ror:8 {DPPF}"); nop(2)
        A(f"v_max_f32_dpp v{vT0}, v{vT0}, v{vT0} row_ror:4 {DPPF}"); nop(2)
        A(f"v_max_f32_dpp v{vT0}, v{vT0}, v{vT0} row_bcast:15 row_mask:0xa bank_mask:0xf"); nop(2)
        A(f"v_max_f32_dpp v{vT0}, v{vT0}, v{vT0} row_bcast:31 row_mask:0xc bank_mask:0xf"); nop(1)
        A(f"v_readlane_b32 s{sT2}, v{vT0}, 63"); nop(2)
        A(f"v_max_f32 v{vT0}, s{sT2}, v{vMc}")
        A(f"v_sub_f32 v{vT1}, v{vMc}, v{vT0}")
        A(f"v_exp_f32 v{vT1}, v{vT1}")
        A(f"v_mov_b32 v{vMc}, v{vT0}")
        A(f"v_mul_f32 v{vL}, v{vL}, v{vT1}")
        for r in range(4): A(f"v_mul_f32 v{vD+r}, v{vD+r}, v{vT1}")
        A(f"v_fma_f32 v{vX}, v{vS}, s{sC}, -v{vMc}")
        A(f"s_branch L_back_{tag}")
    def write_state(sW):
        A(f"v_add_f32_dpp v{vL}, v{vL}, v{vL} row_ror:8 {DPPF}"); nop(2)
        A(f"v_add_f32_dpp v{vL}, v{vL}, v{vL} row_ror:4 {DPPF}"); nop(2)
        A(f"v_add_f32_dpp v{vL}, v{vL}, v{vL} row_bcast:15 row_mask:0xa bank_mask:0xf"); nop(2)
        A(f"v_add_f32_dpp v{vL}, v{vL}, v{vL} row_bcast:31 row_mask:0xc bank_mask:0xf")
        A(f"s_lshl_b32 s{sT0}, s{sW}, 10"); A(f"s_add_u32 s{sT0}, s{sT0}, {ST}")
        A(f"v_add_u32 v{vT0}, s{sT0}, v{vSt}")
        A(f"s_lshl_b32 s{sT0}, s{sW}, 3"); A(f"s_add_u32 s{sT0}, s{sT0}, {ML}")
        A(f"v_mov_b32 v{vT1}, s{sT0}")
        A(f"ds_write2_b32 v{vT0}, v{vD}, v{vD+1} offset0:0 offset1:16")
        A(f"ds_write2_b32 v{vT0}, v{vD+2}, v{vD+3} offset0:32 offset1:48")
        A("s_mov_b32 exec_lo, 0"); A("s_mov_b32 exec_hi, 0x80000000")
        A(f"ds_write_b64 v{vT1}, v[{vMc}:{vL}]")
        A("s_mov_b64 exec, -1")
    def reduce8(y):
        nop(2)
        for k in range(4): A(f"v_permlane32_swap_b32 v{y+2*k}, v{y+2*k+1}")
        for k in range(4): A(f"v_add_f32 v{y+2*k}, v{y+2*k}, v{y+2*k+1}")
        nop(1)
        A(f"v_permlane16_swap_b32 v{y}, v{y+2}")
        A(f"v_permlane16_swap_b32 v{y+4}, v{y+6}")
        A(f"v_add_f32 v{y}, v{y}, v{y+2}"); A(f"v_add_f32 v{y+4}, v{y+4}, v{y+6}")
        nop(1)
        A(f"v_add_f32_dpp v{y+1}, v{y}, v{y} row_ror:8 row_mask:0xf bank_mask:0x3")
        A(f"v_add_f32_dpp v{y+1}, v{y+4}, v{y+4} row_ror:8 row_mask:0xf bank_mask:0xc"); nop(2)
        A(f"v_add_f32_dpp v{y+1}, v{y+1}, v{y+1} row_half_mirror {DPPF}"); nop(2)
        A(f"v_add_f32_dpp v{y+1}, v{y+1}, v{y+1} quad_perm:[1,0,3,2] {DPPF}"); nop(2)
        A(f"v_add_f32_dpp v{y}, v{y+1}, v{y+1} quad_perm:[2,3,0,1] {DPPF}")
    def srd(d, lo, hi, off_s, nbytes):
        if off_s is None:
            A(f"s_mov_b32 s{d}, s{lo}"); A(f"s_mov_b32 s{d+1}, s{hi}")
        else:
            A(f"s_add_u32 s{d}, s{lo}, {off_s}"); A(f"s_addc_u32 s{d+1}, s{hi}, 0")
        A(f"s_mov_b32 s{d+2}, {nbytes}"); A(f"s_mov_b32 s{d+3}, 0x20000")
    def round_bf16(v):
        A(f"v_cvt_pk_bf16_f32 v{v}, 0, v{v}")
    def dump_stamps():
        if not stamp: return
        srd(72, 28, 29, 0x200000, 0x100000)
        A(f"s_lshl_b32 s{sT0}, s2, 3"); A(f"s_add_u32 s{sT0}, s{sT0}, s3"); A(f"s_lshl_b32 s{sT0}, s{sT0}, 8")
        A("s_getreg_b32 s70, hwreg(HW_REG_XCC_ID)")
        A(f"v_writelane_b32 v{vU+6}, s70, 15")
        A(f"v_lshlrev_b32 v{vT0}, 2, v{vLane}")
        A(f"buffer_store_dword v{vU+6}, v{vT0}, s[72:75], s{sT0} offen")

    A(f"s_lshl_b32 s{sT0}, s{sB}, 5"); A(f"s_or_b32 s{sT0}, s{sT0}, s{sH}"); A(f"s_lshl_b32 s{sT0}, s{sT0}, 1")
    A(f"s_or_b32 s{sT0}, s{sT0}, s{sSp}"); A(f"s_lshl_b32 s{sT0}, s{sT0}, 20")
    A(f"s_lshl_b32 s{sT1}, s{sA}, 12")
    A(f"v_lshl_add_u32 v{vOff}, v{vLane}, 4, s{sT1}")
    A(f"s_lshl_b32 s{sT2}, s{sA}, 13")
    A("s_waitcnt lgkmcnt(0)")
    srd(32, 6, 7, f"s{sT0}", 0x100000)
    srd(36, 8, 9, f"s{sT0}", 0x100000)
    STAMP(0)
    n_issued = 0
    for w in range(ZW):
        for t in range(2):
            A(f"s_add_u32 m0, s{sT2}, {w*32768 + t*4096}")
            for i in range(4):
                if n_issued >= D0: A(f"s_waitcnt vmcnt({D0-1})")
                elif i == 0: nop(1)
                A(f"buffer_load_dwordx4 v{vOff}, s[{32+4*t}:{35+4*t}], 0 offen offset:{i*1024} nt lds")
                n_issued += 1
                if n_issued == D0:
                    make_masks(); init_state()
        A(f"v_add_u32 v{vOff}, 0x4000, v{vOff}")
    def ring_load(j):
        r = vRing + 4 * j
        A(f"buffer_load_dwordx4 v[{r}:{r+3}], v{vOff}, s[{32+4*(j//4)}:{35+4*(j//4)}], 0 offen offset:{(j%4)*1024} nt")
    for j in range(D):
        if n_issued >= D0: A(f"s_waitcnt vmcnt({min(D0,D)-1 if j else D0-1})")
        ring_load(j); n_issued += 1
        if n_issued == D0:
            make_masks(); init_state()
    A(f"s_waitcnt vmcnt({D})")
    STAMP(1)
    A("s_barrier")
    read_q()
    STAMP(2)
    A(f"s_mov_b32 s{sCnt}, {NT}")
    L.append(".p2align 6")
    LB("L_loop")
    def pre_stream(step):
        j = step + D
        if j == 8: A(f"v_add_u32 v{vOff}, 0x4000, v{vOff}")
        A(f"s_waitcnt vmcnt({D-1})")
        ring_load(j % 8)
    tile(pre_stream, "s")
    A(f"s_sub_u32 s{sCnt}, s{sCnt}, 1"); A(f"s_cmp_lg_u32 s{sCnt}, 0"); A("s_cbranch_scc1 L_loop")
    STAMP(3)
    write_state(3)
    A("s_waitcnt lgkmcnt(0)")
    A("s_barrier")
    A("s_cmp_lg_u32 s3, 0"); A("s_cbranch_scc1 L_fin")
    A(f"s_lshl_b32 s{sT0}, s2, 12")
    srd(40, 28, 29, f"s{sT0}", 4096)
    A(f"v_lshlrev_b32 v{vT0}, 6, v{vLane}")
    A(f"v_lshlrev_b32 v{vT1}, 3, v{vLane}"); A(f"v_add_u32 v{vT1}, {GB}, v{vT1}")
    A(f"ds_read_b64 v[{vW+16}:{vW+17}], v{vT1}")
    A(f"s_mov_b32 s{sCnt}, {spin}")
    LB("L_poll")
    A(f"buffer_load_dwordx4 v[{vW}:{vW+3}], v{vT0}, s[40:43], 0 offen sc1")
    A(f"buffer_load_dwordx4 v[{vW+4}:{vW+7}], v{vT0}, s[40:43], 0 offen offset:16 sc1")
    A(f"buffer_load_dword v{vW+8}, v{vT0}, s[40:43], 0 offen offset:32 sc1")
    A("s_waitcnt vmcnt(0)")
    A(f"v_max3_u32 v{vT1}, v{vW}, v{vW+1}, v{vW+2}")
    A(f"v_max3_u32 v{vT2}, v{vW+3}, v{vW+4}, v{vW+5}")
    A(f"v_max3_u32 v{vT1}, v{vT1}, v{vW+6}, v{vW+7}")
    A(f"v_max3_u32 v{vT1}, v{vT1}, v{vT2}, v{vW+8}")
    A(f"v_cmp_eq_u32 vcc, -1, v{vT1}")
    A("s_cbranch_vccz L_got")
    A("s_mov_b64 exec, vcc")
    if sleep: A(f"s_sleep {sleep}")
    A(f"s_sub_u32 s{sCnt}, s{sCnt}, 1"); A(f"s_cmp_lg_u32 s{sCnt}, 0"); A("s_cbranch_scc1 L_poll")
    LB("L_got")
    A("s_mov_b64 exec, -1")
    STAMP(4)
    A(f"v_sub_f32_dpp v{vT1}, v{vW+8}, v{vW+8} quad_perm:[1,0,3,2] {DPPF}")
    A(f"v_exp_f32 v{vT1}, v{vT1}"); nop(1)
    A(f"v_add_f32 v{vT1}, 1.0, v{vT1}")
    A(f"v_rcp_f32 v{vT1}, v{vT1}"); nop(1)
    for e in range(8): A(f"v_mul_f32 v{vW+e}, v{vW+e}, v{vT1}")
    reduce8(vW)
    A("s_waitcnt lgkmcnt(0)")
    if mimic:
        round_bf16(vW)
        A(f"v_mul_f32 v{vW}, v{vW}, v{vW+16}")
        round_bf16(vW)
        A(f"v_add_f32 v{vW}, v{vW}, v{vW+17}")
    else:
        A(f"v_fma_f32 v{vW}, v{vW}, v{vW+16}, v{vW+17}")
    A(f"v_cvt_pk_bf16_f32 v{vW}, v{vW}, v{vW}")
    A(f"v_bfe_u32 v{vT0}, v{vLane}, 5, 1"); A(f"v_bfe_u32 v{vT1}, v{vLane}, 4, 1"); A(f"v_bfe_u32 v{vT2}, v{vLane}, 3, 1")
    A(f"v_lshl_add_u32 v{vT0}, v{vT1}, 1, v{vT0}"); A(f"v_lshl_add_u32 v{vT0}, v{vT2}, 2, v{vT0}")
    A(f"v_lshlrev_b32 v{vT0}, 1, v{vT0}")
    srd(44, 24, 25, None, 4096)
    A(f"s_lshl_b32 s{sT0}, s2, 4")
    A("s_mov_b32 exec_lo, 0x01010101"); A("s_mov_b32 exec_hi, 0x01010101")
    A(f"buffer_store_short v{vW}, v{vT0}, s[44:47], s{sT0} offen")
    A("s_mov_b64 exec, -1")
    LB("L_fin")
    STAMP(5)
    dump_stamps()
    A("s_endpgm")
    rare("s")

    L.append(".p2align 6")
    LB("L_aux")
    vG16, vN = vU, vU + 1
    A(f"v_lshrrev_b32 v{vG16}, 4, v{vLane}"); A(f"v_and_b32 v{vN}, 15, v{vLane}")
    A(f"v_lshlrev_b32 v{vT0}, 13, v{vG16}"); A(f"v_lshl_add_u32 v{vOff}, v{vN}, 4, v{vT0}")
    A(f"v_lshl_add_u32 v{vT2}, v{vN}, 2, v{vG16}"); A(f"v_lshlrev_b32 v{vT2}, 1, v{vT2}")
    A(f"s_lshl_b32 s{sT0}, s{sH}, 8")
    A(f"s_lshl_b32 s{sOff}, s{sA}, 20")
    A(f"s_lshl_b32 s{sT1}, s{sB}, 10"); A(f"s_lshl_b32 s{sT2}, s{sA}, 8"); A(f"s_add_u32 s{sT1}, s{sT1}, s{sT2}")
    A("s_waitcnt lgkmcnt(0)")
    srd(48, 4, 5, None, 4096)
    A(f"s_add_u32 s40, s10, s{sT0}"); A("s_addc_u32 s41, s11, 0"); A(f"s_sub_u32 s42, 0x400000, s{sT0}"); A("s_mov_b32 s43, 0x20000")
    STAMP(0)
    vX0 = vU + 2
    A(f"buffer_load_ushort v{vX0}, v{vT2}, s[48:51], s{sT1} offen")
    A(f"buffer_load_ushort v{vX0+1}, v{vT2}, s[48:51], s{sT1} offen offset:128")
    for i in range(32):
        r = vBig + 4 * i
        A(f"buffer_load_dwordx4 v[{r}:{r+3}], v{vOff}, s[40:43], s{sOff} offen {wflags}")
        if i < 31: A(f"s_add_u32 s{sOff}, s{sOff}, 32768")
    make_masks(); init_state()
    A("s_waitcnt vmcnt(32)")
    A(f"v_lshl_or_b32 v{vX0}, v{vX0}, 16, v{vX0}"); A(f"v_lshl_or_b32 v{vX0+1}, v{vX0+1}, 16, v{vX0+1}")
    nop(1)
    for i in range(32):
        b = vB[i & 1]; r = vBig + 4 * i
        for rr in range(4):
            A(f"v_and_b32_dpp v{b+rr}, v{vX0+(i>>4)}, v{vMask[rr]} row_newbcast:{i&15} {DPPF}")
        A(f"s_waitcnt vmcnt({31-i})"); nop(1)
        A(f"v_mfma_f32_16x16x32_bf16 v[{vD}:{vD+3}], v[{r}:{r+3}], v[{b}:{b+3}], v[{vD}:{vD+3}]")
    A(f"s_lshl_b32 s{sT0}, s{sA}, 10"); A(f"s_add_u32 s{sT0}, s{sT0}, {QP}")
    A(f"v_add_u32 v{vT0}, s{sT0}, v{vSt}")
    nop(6)
    A(f"ds_write2_b32 v{vT0}, v{vD}, v{vD+1} offset0:0 offset1:16")
    A(f"ds_write2_b32 v{vT0}, v{vD+2}, v{vD+3} offset0:32 offset1:48")
    A("s_waitcnt lgkmcnt(0)")
    STAMP(1)
    A("s_barrier")
    A(f"s_lshl_b32 s{sT0}, s{sH}, 17")
    srd(40, 12, 13, f"s{sT0}", 0x20000)
    A(f"s_lshl_b32 s{sT1}, s{sA}, 8")
    A(f"v_add_u32 v{vOff}, s{sT1}, v{vOff}")
    for kb in range(4):
        for j in range(8):
            r = vBig + (kb * 8 + j) * 4
            if j % 4 == 0: A(f"s_mov_b32 s{sOff}, {kb*32768 + (j>>2)*4096}")
            A(f"buffer_load_dwordx4 v[{r}:{r+3}], v{vOff}, s[40:43], s{sOff} offen offset:{(j&3)*1024} {wflags}")
    srd(44, 26, 27, None, 256)
    A(f"s_cmp_lg_u32 s{sA}, 0"); A("s_cbranch_scc1 L_noclear")
    A(f"s_lshl_b32 s{sT0}, s2, 12")
    srd(32, 28, 29, f"s{sT0}", 4096)
    for r in range(4): A(f"v_mov_b32 v{vW+r}, -1")
    A(f"v_lshlrev_b32 v{vT0}, 4, v{vLane}")
    for i in range(4): A(f"buffer_store_dwordx4 v[{vW}:{vW+3}], v{vT0}, s[32:35], 0 offen offset:{i*1024} sc1")
    A("s_waitcnt vmcnt(0)")
    A(f"v_mov_b32 v{vT0}, 0"); A(f"v_mov_b32 v{vT1}, 1")
    A("s_mov_b64 exec, 1")
    A(f"buffer_atomic_add v{vT1}, v{vT0}, s[44:47], 0 offen sc1")
    A("s_mov_b64 exec, -1")
    LB("L_noclear")
    for r in range(4): A(f"v_mov_b32 v{vD+r}, 0")
    read_q()
    STAMP(2)
    if ZW:
        vZ = vU + 4
        A(f"s_lshl_b32 s{sT0}, s{sA}, 13")
        A(f"v_lshl_add_u32 v{vZ}, v{vLane}, 4, s{sT0}")
        A(f"s_mov_b32 s{sCnt}, {ZW}")
        LB("L_zloop")
        for j in range(8):
            r = vRing + 4 * j
            A(f"ds_read_b128 v[{r}:{r+3}], v{vZ} offset:{j*1024}")
        def pre_aux(step):
            A(f"s_waitcnt lgkmcnt({7-step})")
            if step >= 4: nop(1)
        tile(pre_aux, "a")
        A(f"v_add_u32 v{vZ}, 0x8000, v{vZ}")
        A(f"s_sub_u32 s{sCnt}, s{sCnt}, 1"); A(f"s_cmp_lg_u32 s{sCnt}, 0"); A("s_cbranch_scc1 L_zloop")
    write_state(3)
    STAMP(3)
    A(f"s_mov_b32 s{sSelLo}, 0x05040100"); A(f"s_mov_b32 s{sSelHi}, 0x07060302")
    A(f"s_cmp_eq_u32 s{sA}, 1"); A("s_cbranch_scc1 L_ffn")
    A(f"s_cmp_eq_u32 s{sA}, 2"); A("s_cbranch_scc1 L_gate")
    A(f"s_cmp_eq_u32 s{sA}, 3"); A("s_cbranch_scc1 L_chk")
    LB("L_join")
    def perm_block(src, dst):
        for e in range(8):
            for t in range(4):
                sel = sSelHi if e & 1 else sSelLo
                A(f"v_perm_b32 v{dst+4*e+t}, v{src+(2*t+1)*4+(e>>1)}, v{src+(2*t)*4+(e>>1)}, s{sel}")
    vKeep = 36
    A(f"v_mov_b32 v{vKeep}, v{vG16}"); A(f"v_mov_b32 v{vKeep+1}, v{vN}")
    if stamp: A(f"v_mov_b32 v{vKeep+2}, v{vU+6}")
    A("s_waitcnt vmcnt(0)")
    blocks = []
    dst = vSpare
    for kb in range(4):
        src = vBig + kb * 32
        perm_block(src, dst); blocks.append(dst); dst = src
    vAcc = dst
    vA1, vA2, vA3, vA4 = 40, 41, 42, 43
    A(f"v_lshrrev_b32 v{vT0}, 2, v{vLane}"); A(f"v_lshlrev_b32 v{vT0}, 6, v{vT0}")
    A(f"v_and_b32 v{vT1}, 3, v{vLane}"); A(f"v_lshl_add_u32 v{vA1}, v{vT1}, 3, v{vT0}")
    A(f"v_add_u32 v{vA1}, {ST}, v{vA1}")
    A(f"v_mov_b32 v{vA2}, {ML}")
    A(f"s_lshl_b32 s{sT0}, s{sA}, 8"); A(f"s_add_u32 s{sT0}, s{sT0}, {OB}")
    A(f"v_lshl_add_u32 v{vA3}, v{vLane}, 2, s{sT0}")
    A(f"v_lshl_add_u32 v{vA4}, v{vKeep}, 4, s{sT0}")
    vPub = 44
    A(f"v_lshlrev_b32 v{vT0}, 12, v{vKeep+1}"); A(f"v_lshl_add_u32 v{vPub}, v{vKeep}, 4, v{vT0}")
    A(f"s_lshl_b32 s{sT0}, s{sB}, 18"); A(f"s_lshl_b32 s{sT1}, s{sA}, 16"); A(f"s_add_u32 s{sT0}, s{sT0}, s{sT1}")
    A(f"s_lshl_b32 s{sT1}, s{sH}, 7"); A(f"s_add_u32 s{sT0}, s{sT0}, s{sT1}")
    A(f"s_lshl_b32 s{sT1}, s{sSp}, 6"); A(f"s_add_u32 s{sOff}, s{sT0}, s{sT1}")
    srd(32, 28, 29, None, 0x100000)
    A(f"v_mov_b32 v45, -2")
    A("s_waitcnt lgkmcnt(0)")
    if stamp:
        A("s_memrealtime s[70:71]"); A("s_waitcnt lgkmcnt(0)"); A(f"v_writelane_b32 v{vKeep+2}, s70, 4")
    A("s_barrier")
    vML, vO = 48, 64
    for i in range(4): A(f"ds_read_b128 v[{vML+4*i}:{vML+4*i+3}], v{vA2} offset:{16*i}")
    for w in range(8): A(f"ds_read_b64 v[{vO+2*w}:{vO+2*w+1}], v{vA1} offset:{w*1024}")
    A("s_waitcnt lgkmcnt(8)")
    A(f"v_max3_f32 v{vT0}, v{vML}, v{vML+2}, v{vML+4}")
    A(f"v_max3_f32 v{vT1}, v{vML+6}, v{vML+8}, v{vML+10}")
    A(f"v_max3_f32 v{vT0}, v{vT0}, v{vML+12}, v{vML+14}")
    A(f"v_max_f32 v{vT0}, v{vT0}, v{vT1}")
    for w in range(8): A(f"v_sub_f32 v{vML+2*w}, v{vML+2*w}, v{vT0}")
    for w in range(8): A(f"v_exp_f32 v{vML+2*w}, v{vML+2*w}")
    A(f"v_mul_f32 v{vT1}, v{vML}, v{vML+1}")
    for w in range(1, 8): A(f"v_fmac_f32 v{vT1}, v{vML+2*w}, v{vML+2*w+1}")
    A(f"v_rcp_f32 v{vT2}, v{vT1}")
    A(f"v_log_f32 v{vT1}, v{vT1}")
    A("s_waitcnt lgkmcnt(0)")
    A(f"v_mul_f32 v{vO}, v{vO}, v{vML}"); A(f"v_mul_f32 v{vO+1}, v{vO+1}, v{vML}")
    for w in range(1, 8):
        A(f"v_fmac_f32 v{vO}, v{vO+2*w}, v{vML+2*w}"); A(f"v_fmac_f32 v{vO+1}, v{vO+2*w+1}, v{vML+2*w}")
    A(f"v_mul_f32 v{vO}, v{vO}, v{vT2}"); A(f"v_mul_f32 v{vO+1}, v{vO+1}, v{vT2}")
    A(f"v_cvt_pk_bf16_f32 v{vO}, v{vO}, v{vO+1}")
    A(f"ds_write_b32 v{vA3}, v{vO}")
    A(f"v_add_f32 v{vT1}, v{vT1}, v{vT0}")
    A("s_waitcnt lgkmcnt(0)")
    vAF = 48
    for kb in range(4): A(f"ds_read_b128 v[{vAF+4*kb}:{vAF+4*kb+3}], v{vA4} offset:{kb*64}")
    vPk = 64
    for r in range(4): A(f"v_min_u32 v{vPk+r}, -2, v{vT1}")
    for kb in range(4):
        A(f"s_waitcnt lgkmcnt({3-kb})")
        for e in range(8):
            c = "0" if kb == 0 else f"v[{vAcc+4*e}:{vAcc+4*e+3}]"
            bb = blocks[kb] + 4 * e
            A(f"v_mfma_f32_16x16x32_bf16 v[{vAcc+4*e}:{vAcc+4*e+3}], v[{vAF+4*kb}:{vAF+4*kb+3}], v[{bb}:{bb+3}], {c}")
    nop(4)
    for e in range(8):
        if e == 4: nop(1)
        A(f"v_min_u32_dpp v{vPk+(e&3)}, v{vAcc+4*e}, v45 quad_perm:[0,1,2,3] row_mask:{1<<(e>>2):#x} bank_mask:0xf")
    A(f"buffer_store_dwordx4 v[{vPk}:{vPk+3}], v{vPub}, s[32:35], s{sOff} offen sc1")
    if stamp:
        A("s_waitcnt vmcnt(0)")
        A(f"v_mov_b32 v{vU+6}, v{vKeep+2}")
        STAMP(5)
        dump_stamps()
    A("s_endpgm")
    if ZW: rare("a")

    def poll_counter(label, off, target):
        A(f"v_mov_b32 v{vT0}, 0")
        A(f"s_mov_b32 s{sCnt}, {spin}")
        LB(label)
        A(f"buffer_load_dword v{vT1}, v{vT0}, s[44:47], 0 offen offset:{off} sc1")
        A("s_waitcnt vmcnt(0)")
        A(f"v_readfirstlane_b32 s{sT0}, v{vT1}"); nop(2)
        A(f"s_cmp_ge_u32 s{sT0}, {target}"); A(f"s_cbranch_scc1 {label}_ok")
        A("s_sleep 32")
        A(f"s_sub_u32 s{sCnt}, s{sCnt}, 1"); A(f"s_cmp_lg_u32 s{sCnt}, 0"); A(f"s_cbranch_scc1 {label}")
        LB(label + "_ok")
    LB("L_chk")
    poll_counter("L_c1", 0, 256)
    A("s_branch L_join")

    LB("L_gate")
    srd(36, 22, 23, None, 1024)
    A(f"v_lshlrev_b32 v{vT0}, 4, v{vLane}")
    A(f"s_lshr_b32 s{sT0}, s2, 6"); A(f"s_lshl_b32 s{sT0}, s{sT0}, 10")
    A(f"buffer_load_dwordx4 v[{vW}:{vW+3}], v{vT0}, s[48:51], s{sT0} offen")
    A(f"buffer_load_dwordx4 v[{vW+4}:{vW+7}], v{vT0}, s[36:39], 0 offen")
    A("s_waitcnt vmcnt(0)")
    vGs = vW + 16
    A(f"v_mov_b32 v{vGs}, 0")
    for r in range(4):
        for hi in range(2):
            if hi:
                A(f"v_and_b32 v{vT0}, 0xffff0000, v{vW+r}"); A(f"v_and_b32 v{vT1}, 0xffff0000, v{vW+4+r}")
            else:
                A(f"v_lshlrev_b32 v{vT0}, 16, v{vW+r}"); A(f"v_lshlrev_b32 v{vT1}, 16, v{vW+4+r}")
            A(f"v_mul_f32 v{vT0}, v{vT0}, v{vT1}")
            if mimic: round_bf16(vT0)
            A(f"v_add_f32 v{vGs}, v{vGs}, v{vT0}")
    nop(2)
    for sh in ["quad_perm:[1,0,3,2]", "quad_perm:[2,3,0,1]", "row_ror:4", "row_ror:8"]:
        A(f"v_add_f32_dpp v{vGs}, v{vGs}, v{vGs} {sh} {DPPF}"); nop(2)
    A(f"v_add_f32_dpp v{vGs}, v{vGs}, v{vGs} row_bcast:15 row_mask:0xa bank_mask:0xf"); nop(2)
    A(f"v_add_f32_dpp v{vGs}, v{vGs}, v{vGs} row_bcast:31 row_mask:0xc bank_mask:0xf"); nop(1)
    A(f"v_readlane_b32 s{sT0}, v{vGs}, 63"); nop(2)
    A(f"v_mov_b32 v{vGs}, s{sT0}")
    if mimic: round_bf16(vGs)
    A(f"v_mul_f32 v{vGs}, {f2u(-LOG2E):#x}, v{vGs}")
    A(f"v_exp_f32 v{vGs}, v{vGs}"); nop(1)
    A(f"v_add_f32 v{vGs}, 1.0, v{vGs}")
    A(f"v_rcp_f32 v{vGs}, v{vGs}"); nop(1)
    if mimic: round_bf16(vGs)
    poll_counter("L_c2", 128, 43)
    A(f"s_lshl_b32 s{sT0}, s2, 11"); A(f"s_add_u32 s{sT0}, s{sT0}, 0x100000")
    srd(36, 28, 29, f"s{sT0}", 43 * 32)
    A(f"v_lshlrev_b32 v{vT0}, 5, v{vLane}")
    A(f"buffer_load_dwordx4 v[{vW}:{vW+3}], v{vT0}, s[36:39], 0 offen sc1")
    A(f"buffer_load_dwordx4 v[{vW+4}:{vW+7}], v{vT0}, s[36:39], 0 offen offset:16 sc1")
    A("s_waitcnt vmcnt(0)")
    reduce8(vW)
    A(f"v_sub_f32 v{vT0}, 1.0, v{vGs}")
    if mimic:
        round_bf16(vW); round_bf16(vT0)
    A(f"v_mul_f32 v{vGs+1}, v{vW}, v{vT0}")
    if mimic: round_bf16(vGs + 1)
    A(f"v_lshlrev_b32 v{vT1}, 3, v{vLane}"); A(f"v_add_u32 v{vT1}, {GB}, v{vT1}")
    A(f"ds_write_b64 v{vT1}, v[{vGs}:{vGs+1}]")
    A("s_branch L_join")

    LB("L_ffn")
    sGi = 65
    A(f"s_and_b32 s{sT0}, s2, 7"); A(f"s_lshr_b32 s{sT1}, s2, 3")
    A(f"s_cmp_lt_u32 s{sT0}, 3"); A(f"s_cselect_b32 s{sT2}, 6, 5")
    A(f"s_cmp_ge_u32 s{sT1}, s{sT2}"); A("s_cbranch_scc1 L_join")
    A(f"s_mul_i32 s{sGi}, s{sT0}, 5"); A(f"s_min_u32 s{sT0}, s{sT0}, 3")
    A(f"s_add_u32 s{sGi}, s{sGi}, s{sT0}"); A(f"s_add_u32 s{sGi}, s{sGi}, s{sT1}")
    A("s_waitcnt vmcnt(0)")
    srd(32, 16, 17, None, 512 * 2752)
    srd(36, 18, 19, None, 512 * 2752)
    vFo, vXo = vU + 2, vU + 3
    A(f"v_mul_u32_u24 v{vT0}, {8*2752}, v{vG16}"); A(f"v_lshl_add_u32 v{vFo}, v{vN}, 2, v{vT0}")
    A(f"s_lshl_b32 s{sT0}, s{sGi}, 6"); A(f"v_add_u32 v{vFo}, s{sT0}, v{vFo}")
    A(f"v_lshrrev_b32 v{vT0}, 2, v{vN}"); A(f"v_lshlrev_b32 v{vT0}, 10, v{vT0}"); A(f"v_lshl_add_u32 v{vXo}, v{vG16}, 4, v{vT0}")
    vFa = 2
    for r in range(16): A(f"v_mov_b32 v{vFa+r}, 0")
    vLd, vXf, vPb = 36, 68, 76
    A(f"s_mov_b32 s{sOff}, 0"); A(f"s_mov_b32 s{sT1}, 0"); A(f"s_mov_b32 s{sCnt}, 8")
    LB("L_f1")
    for kk in range(2):
        A(f"buffer_load_dwordx4 v[{vXf+4*kk}:{vXf+4*kk+3}], v{vXo}, s[48:51], s{sT1} offen offset:{kk*64}")
    for kk in range(2):
        for j in range(8):
            A(f"s_add_u32 s{sT0}, s{sOff}, {(kk*32+j)*2752}")
            A(f"buffer_load_dword v{vLd+kk*16+j}, v{vFo}, s[32:35], s{sT0} offen {wflags}")
            A(f"buffer_load_dword v{vLd+kk*16+8+j}, v{vFo}, s[36:39], s{sT0} offen {wflags}")
    A("s_waitcnt vmcnt(0)")
    for kk in range(2):
        for m in range(2):
            src = vLd + kk * 16 + m * 8
            for e in range(2):
                for t in range(4):
                    A(f"v_perm_b32 v{vPb+(m*2+e)*4+t}, v{src+2*t+1}, v{src+2*t}, s{sSelHi if e else sSelLo}")
        nop(2)
        for i in range(4):
            A(f"v_mfma_f32_16x16x32_bf16 v[{vFa+4*i}:{vFa+4*i+3}], v[{vXf+4*kk}:{vXf+4*kk+3}], v[{vPb+4*i}:{vPb+4*i+3}], v[{vFa+4*i}:{vFa+4*i+3}]")
    A(f"s_add_u32 s{sOff}, s{sOff}, {64*2752}"); A(f"s_add_u32 s{sT1}, s{sT1}, 128")
    A(f"s_sub_u32 s{sCnt}, s{sCnt}, 1"); A(f"s_cmp_lg_u32 s{sCnt}, 0"); A("s_cbranch_scc1 L_f1")
    nop(8)
    for e in range(2):
        g_, u_ = vFa + 4 * e, vFa + 8 + 4 * e
        if mimic: round_bf16(g_); round_bf16(u_)
        A(f"v_mul_f32 v{vT0}, {f2u(-LOG2E):#x}, v{g_}")
        A(f"v_exp_f32 v{vT0}, v{vT0}"); nop(1)
        A(f"v_add_f32 v{vT0}, 1.0, v{vT0}")
        A(f"v_rcp_f32 v{vT0}, v{vT0}"); nop(1)
        A(f"v_mul_f32 v{g_}, v{g_}, v{vT0}")
        if mimic: round_bf16(g_)
        A(f"v_mul_f32 v{g_}, v{g_}, v{u_}")
    A(f"v_cvt_pk_bf16_f32 v{vT0}, v{vFa}, v{vFa+4}")
    A(f"v_lshlrev_b32 v{vT1}, 2, v{vLane}"); A(f"v_add_u32 v{vT1}, {FH}, v{vT1}")
    A(f"ds_write_b32 v{vT1}, v{vT0}")
    A(f"v_lshrrev_b32 v{vT0}, 2, v{vN}"); A(f"v_lshlrev_b32 v{vT0}, 6, v{vT0}"); A(f"v_lshl_add_u32 v{vT1}, v{vG16}, 4, v{vT0}")
    A(f"v_add_u32 v{vT1}, {FH}, v{vT1}")
    A("s_waitcnt lgkmcnt(0)")
    vHf = 2
    A(f"ds_read_b128 v[{vHf}:{vHf+3}], v{vT1}")
    A(f"s_lshl_b32 s{sT0}, s{sGi}, 15")
    srd(32, 20, 21, f"s{sT0}", 32768)
    srd(36, 28, 29, 0x100000, 0x80000)
    A(f"v_lshlrev_b32 v{vT0}, 13, v{vG16}"); A(f"v_lshl_add_u32 v{vFo}, v{vN}, 4, v{vT0}")
    A(f"v_lshlrev_b32 v{vT0}, 17, v{vG16}"); A(f"v_lshl_add_u32 v{vXo}, v{vN}, 11, v{vT0}")
    A(f"s_lshl_b32 s{sT1}, s{sGi}, 5")
    A(f"s_mov_b32 s{sOff}, 0"); A(f"s_mov_b32 s{sCnt}, 4")
    vP2, vAc2, vOut = 68, 36, 8
    LB("L_f2")
    A(f"s_add_u32 s{sT0}, s{sOff}, 4096")
    for j in range(8):
        so = f"s{sOff}" if j < 4 else f"s{sT0}"
        A(f"buffer_load_dwordx4 v[{vLd+4*j}:{vLd+4*j+3}], v{vFo}, s[32:35], {so} offen offset:{(j&3)*1024} {wflags}")
    A("s_waitcnt vmcnt(0) lgkmcnt(0)")
    perm_block(vLd, vP2)
    nop(2)
    for e in range(8):
        A(f"v_mfma_f32_16x16x32_bf16 v[{vAc2+4*e}:{vAc2+4*e+3}], v[{vHf}:{vHf+3}], v[{vP2+4*e}:{vP2+4*e+3}], 0")
    nop(8)
    for e in range(8): A(f"v_mov_b32 v{vOut+e}, v{vAc2+4*e}")
    A(f"buffer_store_dwordx4 v[{vOut}:{vOut+3}], v{vXo}, s[36:39], s{sT1} offen sc1")
    A(f"buffer_store_dwordx4 v[{vOut+4}:{vOut+7}], v{vXo}, s[36:39], s{sT1} offen offset:16 sc1")
    A(f"s_add_u32 s{sOff}, s{sOff}, 256"); A(f"s_add_u32 s{sT1}, s{sT1}, 32768")
    A(f"s_sub_u32 s{sCnt}, s{sCnt}, 1"); A(f"s_cmp_lg_u32 s{sCnt}, 0"); A("s_cbranch_scc1 L_f2")
    A("s_waitcnt vmcnt(0)")
    A(f"v_mov_b32 v{vT0}, 128"); A(f"v_mov_b32 v{vT1}, 1")
    A("s_mov_b64 exec, 1")
    A(f"buffer_atomic_add v{vT1}, v{vT0}, s[44:47], 0 offen sc1")
    A("s_mov_b64 exec, -1")
    A("s_branch L_join")

    LB("L_end")
    A("s_endpgm")
    L.append('.section .rodata,"a"'); L.append(".p2align 6"); L.append(f".amdhsa_kernel {NAME}_kernel")
    L.append("  .amdhsa_next_free_vgpr 256"); L.append("  .amdhsa_next_free_sgpr 80"); L.append("  .amdhsa_accum_offset 256")
    L.append("  .amdhsa_group_segment_fixed_size 0"); L.append("  .amdhsa_kernarg_size 104"); L.append("  .amdhsa_user_sgpr_count 2")
    L.append("  .amdhsa_user_sgpr_kernarg_segment_ptr 1"); L.append("  .amdhsa_system_sgpr_workgroup_id_x 1"); L.append(".end_amdhsa_kernel")
    return "\n".join(L) + "\n"

def emit(cfgs):
    import subprocess
    ok = []
    for c in cfgs:
        n = "k_" + "_".join(f"{k}{str(v).replace(' ','')}" for k, v in c.items())
        open(f"dev/{n}.s", "w").write(gen(**c)); ok.append(n)
        r = subprocess.run(["clang", "-x", "assembler", "-target", "amdgcn-amd-amdhsa", "-mcpu=gfx950", "-c", f"dev/{n}.s", "-o", "x.o"], capture_output=True, text=True)
        assert r.returncode == 0, r.stderr
    print(" ".join(f"dev/{n}.s" for n in ok))

if __name__ == "__main__":
    emit(eval(sys.argv[1]))
```

```python
import sys, math, struct
NAME = "gated_mix__mha_block_cached__swiglu_ffn__decode"

def f2u(x): return struct.unpack("<I", struct.pack("<f", x))[0]
LOG2E = 1.4426950408889634
SCALE = 128 ** -0.5
F2OFF, F1OFF, EOFF, POFF = 0x100000, 0x120000, 0x180000, 0x1a0000

HEADER = open("cdna_kernels/" + NAME + ".s.ref").read().split("; Override launch geometry")[0]

DOC = """;
"""

def gen(ZT=8, BT=6, XD=4, Dk='55555555', Dv='55555555', DE=10, NE=2, NEe=0, D2=0, pf=2, pff=1, pfw=9, p1='', p2='nt', pq='', D0=5, hmap=2, gate_tile=84, f2_tile=60, WP=2, WF=8, WQ=3, touch='', ctl=1, DB=6, CK=(), T0=1, SH=0, NMAX=4, PE=8, pack=0, cf='sc1', rd='v', sf='sc1', MUL=1, oth=0, refm=1, cslp=4, NP=1, stag=8, cons=2, pad=0, ps=15, pw=(11, 12), sq=(13, 10), smap=1, t1=1, dry=0, lay=1, gsp=1, gslp=32, CKK=(42,), TK=12, MK=1, SK=1, NK=10, Dkd='77777765', CL=(0, 4, 8), TL=12, SL=2, NL=4, KX=0, XC=4, XS=8, TS=None, SS=2, NS=2, slow='4444444444444445', lsf='', llf='sc1', lpack=0, TE=None, xf='',
        kf='nt', lflags='sc1', sflags='sc1', pubf='sc1', pollf='sc1', outf='', mimic=1, stamp=0, dis='', spin=1 << 18, sleep=2):
    Dk = [int(c) for c in Dk]; Dv = [int(c) for c in Dv]; D = Dk[7]
    assert Dv[7] == D
    for X in (Dk, Dv):
        for i in range(8): assert X[i] >= X[i-1] - 1 and X[i] <= 7
    assert D <= 7 and ZT % 2 == 0 and ZT >= 2 and BT % 2 == 0 and BT <= 8
    assert len(CK) + len(CL) + len(CKK) <= 10
    L = []
    def A(s): L.append("    " + s)
    def LB(s): L.append(s + ":")
    def nop(n):
        if n > 0: A(f"s_nop {n-1}")
    free = [b for b in range(10, 22) if b not in (ps,) + tuple(pw)]
    free = list(sq) + [b for b in free if b not in sq]
    def dep(i): return sum(((i >> k) & 1) << free[k] for k in range(9))
    def inc(t): return dep(4 * ((t & 1) + 1)) - dep(4 * (t & 1))
    for t in range(64): assert dep(4 * (t + 1)) - dep(4 * t) == inc(t)
    sSo = 85
    pos = [sorted(dep(x) for x in range(4)).index(dep(j)) * 1024 for j in range(4)]
    def so(j): return "0" if dep(j) == pos[j] else f"s{sSo+j-1}"
    ZB = ZT * 16384
    QP = ZB
    ST = QP + 4096
    GS = 1024 + 64
    SC = ST + 4096
    ZM = SC + 16 * GS
    MW = ZM + 32
    FW = MW + 16
    DU = FW + 32
    OB = FW + 48
    GB = OB + 1024
    PR = GB + 1024
    LDS = PR + 1024
    assert ZM % 16 == 0 and FW % 16 == 0 and OB % 16 == 0 and LDS <= 163840
    LDS = max(LDS, 84 * 1024)
    vLane, vOff = 0, 1
    vMask = [2, 3, 4, 5]; vQ = [6, 7, 8, 9]
    vMc, vL = 10, 11
    vA = [12, 13, 14, 15]; vR0, vR1, vS, vX, vPP, vT0, vT1, vT2 = 16, 17, 18, 19, 20, 21, 22, 23
    vD = 24; vB = [28, 32]; vRing = 36
    vW = 68
    vSt = 100
    vU = 101
    vSpare = 96
    vBig = 128
    sH, sB, sSp, sA = 52, 53, 54, 55
    sOff, sCnt, sT0, sT1, sT2, sC, sSc = 56, 57, 58, 59, 60, 61, 62
    sSelLo, sSelHi, sCnt2, sRow = 63, 64, 65, 66
    sE = 76
    sTag = 67
    sCo = 88
    DPPF = "row_mask:0xf bank_mask:0xf"
    stamp_reg = [vU + 6]
    def STAMP(idx):
        if not stamp: return
        A("s_memrealtime s[70:71]")
        A("s_waitcnt lgkmcnt(0)")
        A(f"v_writelane_b32 v{stamp_reg[0]}, s70, {idx}")
        if idx in (2, 3):
            A("s_memtime s[70:71]")
            A("s_waitcnt lgkmcnt(0)")
            A(f"v_writelane_b32 v{stamp_reg[0]}, s70, {idx+8}")

    L.append(HEADER.rstrip("\n"))
    L.append(f"; @launch grid=(256,1,1) block=(512,1,1) lds={LDS}")
    L.append(DOC.rstrip("\n"))
    L.append('.amdgcn_target "amdgcn-amd-amdhsa--gfx950"')
    L.append(".text"); L.append(f".globl {NAME}_kernel"); L.append(".p2align 12\n.p2align 8" if lay else ".p2align 8"); L.append(f".type {NAME}_kernel,@function")
    LB(f"{NAME}_kernel")
    A("s_cmp_ge_u32 s2, 256"); A("s_cbranch_scc1 L_end")
    A("s_load_dwordx16 s[4:19], s[0:1], 0")
    A("s_load_dwordx8 s[20:27], s[0:1], 64")
    A("s_load_dwordx2 s[28:29], s[0:1], 96")
    A("v_lshrrev_b32 v1, 6, v0")
    A("v_and_b32 v0, 63, v0")
    A("v_readfirstlane_b32 s3, v1")
    if stamp: A(f"v_mov_b32 v{vU+6}, 0")
    if hmap == 0:
        A(f"s_and_b32 s{sH}, s2, 7"); A(f"s_lshr_b32 s{sT0}, s2, 6"); A(f"s_lshl_b32 s{sT0}, s{sT0}, 3"); A(f"s_or_b32 s{sH}, s{sH}, s{sT0}")
    else:
        A(f"s_lshr_b32 s{sT0}, s2, 6"); A(f"s_lshl_b32 s{sH}, s{sT0}, 1"); A(f"s_add_u32 s{sH}, s{sH}, s2"); A(f"s_and_b32 s{sH}, s{sH}, 7")
        A(f"s_lshl_b32 s{sT0}, s{sT0}, 3"); A(f"s_or_b32 s{sH}, s{sH}, s{sT0}")
    A(f"s_bfe_u32 s{sB}, s2, 0x20004")
    A(f"s_bfe_u32 s{sSp}, s2, 0x10003")
    A(f"s_and_b32 s{sA}, s3, 3")
    A(f"s_lshl_b32 s{sRow}, s{sB}, 5"); A(f"s_or_b32 s{sRow}, s{sRow}, s{sH}"); A(f"s_lshl_b32 s{sRow}, s{sRow}, 1")
    A(f"s_or_b32 s{sRow}, s{sRow}, s{sSp}")
    A("s_cmp_ge_u32 s3, 4"); A("s_cbranch_scc1 L_aux")

    def make_masks():
        A(f"v_and_b32 v{vT0}, 1, v{vLane}")
        A(f"v_lshlrev_b32 v{vT0}, 4, v{vT0}")
        A(f"v_mov_b32 v{vT1}, 0xffff")
        A(f"v_lshlrev_b32 v{vT1}, v{vT0}, v{vT1}")
        A(f"v_bfe_u32 v{vT0}, v{vLane}, 1, 3")
        for r in range(4):
            A(f"v_cmp_eq_u32 vcc, {r}, v{vT0}"); nop(2)
            A(f"v_cndmask_b32 v{vMask[r]}, 0, v{vT1}, vcc")
        A(f"v_lshrrev_b32 v{vT0}, 4, v{vLane}"); A(f"v_lshlrev_b32 v{vT0}, 8, v{vT0}")
        A(f"v_and_b32 v{vT1}, 15, v{vLane}"); A(f"v_lshl_add_u32 v{vSt}, v{vT1}, 2, v{vT0}")
    def init_state():
        A(f"v_mov_b32 v{vMc}, 0xff7fffff"); A(f"v_mov_b32 v{vL}, 0")
        for r in range(4): A(f"v_mov_b32 v{vD+r}, 0")
        if mimic:
            A(f"s_mov_b32 s{sC}, {f2u(LOG2E):#x}"); A(f"s_mov_b32 s{sSc}, {f2u(SCALE):#x}")
        else:
            A(f"s_mov_b32 s{sC}, {f2u(LOG2E*SCALE):#x}")
    def read_q():
        A(f"v_and_b32 v{vT0}, 15, v{vLane}"); A(f"v_lshlrev_b32 v{vT0}, 6, v{vT0}")
        A(f"v_add_u32 v{vT0}, {QP}, v{vT0}")
        for a in range(4):
            A(f"ds_read_b128 v[{vW+a*8}:{vW+a*8+3}], v{vT0} offset:{a*1024}")
            A(f"ds_read_b128 v[{vW+a*8+4}:{vW+a*8+7}], v{vT0} offset:{a*1024+16}")
        A("s_waitcnt lgkmcnt(4)")
        for j in range(8): A(f"v_add_f32 v{vW+j}, v{vW+j}, v{vW+8+j}")
        A("s_waitcnt lgkmcnt(0)")
        for j in range(8): A(f"v_add_f32 v{vW+16+j}, v{vW+16+j}, v{vW+24+j}")
        for j in range(8): A(f"v_add_f32 v{vW+j}, v{vW+j}, v{vW+16+j}")
        for r in range(4): A(f"v_cvt_pk_bf16_f32 v{vQ[r]}, v{vW+2*r}, v{vW+2*r+1}")
    vSa, vSn, vZm = vU + 2, vU + 3, 108
    def score_addr():
        A(f"v_bfe_u32 v{vT0}, v{vLane}, 2, 1"); A(f"v_bfe_u32 v{vT1}, v{vLane}, 3, 1")
        A(f"v_lshl_add_u32 v{vT0}, v{vT0}, 1, v{vT1}")
        A(f"v_lshrrev_b32 v{vT1}, 4, v{vLane}"); A(f"v_mul_u32_u24 v{vT1}, {GS}, v{vT1}")
        A(f"v_lshl_add_u32 v{vT0}, v{vT0}, 2, v{vT1}")
        A(f"s_mul_i32 s{sT1}, s{sA}, {4*GS}"); A(f"s_add_u32 s{sT1}, s{sT1}, {SC}")
        A(f"v_add_u32 v{vSa}, s{sT1}, v{vT0}")
    def ktile(pre, slot0, off, ring=None):
        for i in range(4):
            pre(slot0 + i)
            k = (vRing if ring is None else ring) + 4 * (slot0 + i)
            A(f"v_dot2_f32_bf16 v{vA[i]}, v{k}, v{vQ[0]}, 0")
            for r in range(1, 4): A(f"v_dot2_f32_bf16 v{vA[i]}, v{k+r}, v{vQ[r]}, v{vA[i]}")
            if i == 1:
                A(f"v_add_f32_dpp v{vR0}, v{vA[0]}, v{vA[0]} row_ror:8 row_mask:0xf bank_mask:0x3")
            if i == 2:
                A(f"v_add_f32_dpp v{vR0}, v{vA[1]}, v{vA[1]} row_ror:8 row_mask:0xf bank_mask:0xc")
        A(f"v_add_f32_dpp v{vR1}, v{vA[2]}, v{vA[2]} row_ror:8 row_mask:0xf bank_mask:0x3")
        A(f"v_add_f32_dpp v{vS}, v{vR0}, v{vR0} row_half_mirror row_mask:0xf bank_mask:0x5")
        nop(1)
        A(f"v_add_f32_dpp v{vR1}, v{vA[3]}, v{vA[3]} row_ror:8 row_mask:0xf bank_mask:0xc")
        nop(2)
        A(f"v_add_f32_dpp v{vS}, v{vR1}, v{vR1} row_half_mirror row_mask:0xf bank_mask:0xa")
        nop(2)
        A(f"v_add_f32_dpp v{vS}, v{vS}, v{vS} quad_perm:[1,0,3,2] {DPPF}")
        nop(2)
        A(f"v_add_f32_dpp v{vS}, v{vS}, v{vS} quad_perm:[2,3,0,1] {DPPF}")
        if mimic:
            A(f"v_cvt_pk_bf16_f32 v{vS}, 0, v{vS}")
            A(f"v_mul_f32 v{vS}, s{sSc}, v{vS}")
            A(f"v_cvt_pk_bf16_f32 v{vS}, 0, v{vS}")
        A(f"ds_write_b32 v{vSa}, v{vS} offset:{off}")
        A(f"v_max_f32 v{vMc}, v{vMc}, v{vS}")
    def wave_max(v, sdst):
        nop(2)
        A(f"v_max_f32_dpp v{v}, v{v}, v{v} row_ror:8 {DPPF}"); nop(2)
        A(f"v_max_f32_dpp v{v}, v{v}, v{v} row_ror:4 {DPPF}"); nop(2)
        A(f"v_max_f32_dpp v{v}, v{v}, v{v} row_bcast:15 row_mask:0xa bank_mask:0xf"); nop(2)
        A(f"v_max_f32_dpp v{v}, v{v}, v{v} row_bcast:31 row_mask:0xc bank_mask:0xf"); nop(1)
        A(f"v_readlane_b32 s{sdst}, v{v}, 63"); nop(2)
    def reduce8(y):
        nop(2)
        for k in range(4): A(f"v_permlane32_swap_b32 v{y+2*k}, v{y+2*k+1}")
        for k in range(4): A(f"v_add_f32 v{y+2*k}, v{y+2*k}, v{y+2*k+1}")
        nop(1)
        A(f"v_permlane16_swap_b32 v{y}, v{y+2}")
        A(f"v_permlane16_swap_b32 v{y+4}, v{y+6}")
        A(f"v_add_f32 v{y}, v{y}, v{y+2}"); A(f"v_add_f32 v{y+4}, v{y+4}, v{y+6}")
        nop(1)
        A(f"v_add_f32_dpp v{y+1}, v{y}, v{y} row_ror:8 row_mask:0xf bank_mask:0x3")
        A(f"v_add_f32_dpp v{y+1}, v{y+4}, v{y+4} row_ror:8 row_mask:0xf bank_mask:0xc"); nop(2)
        A(f"v_add_f32_dpp v{y+1}, v{y+1}, v{y+1} row_half_mirror {DPPF}"); nop(2)
        A(f"v_add_f32_dpp v{y+1}, v{y+1}, v{y+1} quad_perm:[1,0,3,2] {DPPF}"); nop(2)
        A(f"v_add_f32_dpp v{y}, v{y+1}, v{y+1} quad_perm:[2,3,0,1] {DPPF}")
    def srd(d, lo, hi, off_s, nbytes):
        if off_s is None:
            A(f"s_mov_b32 s{d}, s{lo}"); A(f"s_mov_b32 s{d+1}, s{hi}")
        else:
            A(f"s_add_u32 s{d}, s{lo}, {off_s}"); A(f"s_addc_u32 s{d+1}, s{hi}, 0")
        A(f"s_mov_b32 s{d+2}, {nbytes}"); A(f"s_mov_b32 s{d+3}, 0x20000")
    def round_bf16(v):
        A(f"v_cvt_pk_bf16_f32 v{v}, 0, v{v}")
    def dump_stamps():
        if not stamp: return
        srd(72, 28, 29, 0x200000, 0x100000)
        A(f"s_lshl_b32 s{sT0}, s2, 3"); A(f"s_add_u32 s{sT0}, s{sT0}, s3"); A(f"s_lshl_b32 s{sT0}, s{sT0}, 8")
        A("s_getreg_b32 s70, hwreg(HW_REG_XCC_ID)")
        A(f"v_writelane_b32 v{stamp_reg[0]}, s70, 15")
        A(f"v_lshlrev_b32 v{vT0}, 2, v{vLane}")
        A("s_mov_b64 exec, 0xffff")
        A(f"buffer_store_dword v{stamp_reg[0]}, v{vT0}, s[72:75], s{sT0} offen nt")

    A(f"s_lshr_b32 s{sT0}, s{sRow}, 1"); A(f"s_lshl_b32 s{sT0}, s{sT0}, 21")
    A(f"s_lshl_b32 s{sT2}, s{sA}, 12")
    A(f"v_lshl_add_u32 v116, v{vLane}, 4, s{sT2}")
    A(f"s_lshl_b32 s{sT1}, s{sSp}, {ps}")
    A(f"s_and_b32 s69, s{sA}, 1"); A(f"s_lshl_b32 s69, s69, {pw[0]}"); A(f"s_add_u32 s{sT1}, s{sT1}, s69")
    A(f"s_lshr_b32 s69, s{sA}, 1"); A(f"s_lshl_b32 s69, s69, {pw[1]}"); A(f"s_add_u32 s{sT1}, s{sT1}, s69")
    A(f"v_lshl_add_u32 v{vOff}, v{vLane}, 4, s{sT1}")
    for j in range(1, 4):
        if dep(j) != pos[j]: A(f"s_mov_b32 s{sSo+j-1}, {dep(j) - pos[j]}")
    n_issued = 0
    if pf == 2:
        p0, p1_, p2_, p3 = 112, 113, 114, 115
        A(f"v_lshrrev_b32 v{vT0}, 4, v{vLane}"); A(f"v_and_b32 v{vT1}, 15, v{vLane}")
        A(f"s_bfe_u32 s68, s2, 0x30003")
        A(f"s_lshl_b32 s69, s{sA}, 20"); A("s_lshl_b32 s70, s68, 17"); A("s_add_u32 s69, s69, s70")
        A(f"s_lshl_b32 s70, s{sH}, 8"); A("s_add_u32 s69, s69, s70")
        A(f"v_lshl_add_u32 v{p0}, v{vT1}, 4, s69"); A(f"v_lshl_add_u32 v{p0}, v{vT0}, 13, v{p0}")
        A(f"s_lshl_b32 s69, s{sH}, 17"); A("s_lshl_b32 s70, s68, 14"); A("s_add_u32 s69, s69, s70")
        A(f"v_add_u32 v{p1_}, s69, v116")
        A(f"s_lshr_b32 s71, s2, 3"); A("s_lshl_b32 s71, s71, 2"); A(f"s_add_u32 s71, s71, s{sA}")
        A("s_mul_i32 s69, s71, 3072")
        A(f"v_lshl_add_u32 v{p2_}, v{vLane}, 4, s69")
        A("s_lshr_b32 s69, s71, 4"); A("s_lshl_b32 s69, s69, 18")
        A("s_and_b32 s70, s71, 15"); A("s_lshl_b32 s70, s70, 13"); A("s_add_u32 s69, s69, s70")
        A("s_bfe_u32 s70, s2, 0x10002"); A("s_lshl_b32 s70, s70, 17"); A("s_add_u32 s69, s69, s70")
        A("s_and_b32 s71, s2, 3"); A("s_lshl_b32 s70, s71, 8"); A("s_add_u32 s69, s69, s70")
        A(f"v_lshl_add_u32 v{p3}, v{vT1}, 4, s69"); A(f"v_lshl_add_u32 v{p3}, v{vT0}, 11, v{p3}")
        A(f"s_mul_i32 s71, s71, {128*2752}")
        A("s_mov_b32 s42, 0x400000"); A("s_mov_b32 s43, 0x20000")
        A("s_mov_b32 s68, 0x8000"); A("s_mov_b32 s69, 0x10000"); A("s_mov_b32 s70, 0x18000")
    A("s_waitcnt lgkmcnt(0)")
    if pf == 2:
        def pload(v, so, off):
            nonlocal n_issued
            if n_issued >= D0: A(f"s_waitcnt vmcnt({D0-1})")
            A(f"buffer_load_dwordx4 v[{vRing}:{vRing+3}], v{v}, s[40:43], {so} offen offset:{off} {p1}")
            n_issued += 1
        A("s_mov_b32 s40, s10"); A("s_mov_b32 s41, s11")
        for so_ in ("0", "s68", "s69", "s70"): pload(p0, so_, 0)
        A("s_mov_b32 s40, s12"); A("s_mov_b32 s41, s13")
        pload(p1_, "0", 0)
    srd(32, 6, 7, f"s{sT0}", 0x400000)
    A(f"s_add_u32 s36, s8, s{sT0}"); A("s_addc_u32 s37, s9, 0")
    def setup():
        A("s_sub_u32 s36, s36, 0x200000"); A("s_subb_u32 s37, s37, 0")
        A(f"s_lshl_b32 s{sT0}, s{sB}, 8"); A(f"s_add_u32 s{sT0}, s{sT0}, {EOFF:#x}")
        A(f"s_load_dword s{sTag}, s[28:29], s{sT0}")
        make_masks(); init_state(); score_addr()
        if smap:
            A(f"s_and_b32 s{sCo}, s2, 7"); A(f"s_lshl_b32 s{sCo}, s{sCo}, 3"); A(f"s_lshr_b32 s89, s2, 6"); A("s_lshl_b32 s89, s89, 1")
            A(f"s_add_u32 s{sCo}, s{sCo}, s89"); A(f"s_add_u32 s{sCo}, s{sCo}, s{sSp}"); A(f"s_lshl_b32 s89, s{sB}, 6"); A(f"s_add_u32 s{sCo}, s{sCo}, s89")
        else:
            A(f"s_mov_b32 s{sCo}, s{sRow}")
    if pf == 2:
        assert D0 == 5
        A("s_mov_b32 s68, s71")
        STAMP(0)
        setup()
        for i in range(1, 4): pload(p1_, "0", i * 1024)
        A("s_bitcmp1_b32 s2, 2")
        A("s_cselect_b32 s40, s18, s16"); A("s_cselect_b32 s41, s19, s17")
        A("s_add_u32 s40, s40, s68"); A("s_addc_u32 s41, s41, 0"); A(f"s_mov_b32 s42, {128*2752}")
        for i in range(3): pload(p2_, "0", i * 1024)
        A("s_mov_b32 s40, s20"); A("s_mov_b32 s41, s21"); A(f"s_mov_b32 s42, {1376*1024}")
        for i in range(2): pload(p3, "0", i * 1024)
    else:
        STAMP(0)
    for z in range(ZT):
        A(f"s_add_u32 m0, s{sT2}, {z*16384}")
        for i in range(4):
            if n_issued >= D0: A(f"s_waitcnt vmcnt({D0-1})")
            elif i == 0: nop(1)
            A(f"buffer_load_dwordx4 v{vOff}, s[32:35], {so(i)} offen offset:{pos[i]} {kf} lds")
            n_issued += 1
            if n_issued == D0: setup()
        A(f"v_add_u32 v{vOff}, {inc(z)}, v{vOff}")
        if z == 3: STAMP(4)
    assert n_issued >= D0
    def ring_load(j):
        r = vRing + 4 * (j % 8)
        A(f"buffer_load_dwordx4 v[{r}:{r+3}], v{vOff}, s[32:35], {so(j%4)} offen offset:{pos[j%4]} {kf}")
    vBk = 128
    left = 4 * BT + D
    for t in range(BT):
        for i in range(4):
            if left > XD: A(f"s_waitcnt vmcnt({D0-1})")
            left -= 1
            r = vBk + 16 * t + 4 * i
            A(f"buffer_load_dwordx4 v[{r}:{r+3}], v{vOff}, s[32:35], {so(i)} offen offset:{pos[i]} {kf}")
        A(f"v_add_u32 v{vOff}, {inc(t)}, v{vOff}")
    for j in range(D):
        if j == 4: A(f"v_add_u32 v{vOff}, {inc(0)}, v{vOff}")
        if left > XD: A(f"s_waitcnt vmcnt({D0-1})")
        left -= 1
        ring_load(j)
    vPr, vZa = vU, vU + 1
    A(f"s_lshl_b32 s{sT0}, s{sA}, 8"); A(f"s_add_u32 s{sT0}, s{sT0}, {PR}")
    A(f"v_lshl_add_u32 v{vPr}, v{vLane}, 2, s{sT0}")
    A(f"ds_write_b32 v{vPr}, v{vOff}")
    A(f"s_lshl_b32 s{sT0}, s{sA}, 3"); A(f"s_add_u32 s{sT0}, s{sT0}, {ZM}"); A(f"v_mov_b32 v{vZa}, s{sT0}")
    A(f"v_add_u32 v{vSa}, {ZT*16}, v{vSa}")
    A(f"s_mov_b32 s{sCnt}, {(64-ZT-BT)//2 - (1 if BT else 0)}")
    A(f"s_mov_b32 s{sCnt2}, {ZT + BT + (D-1)//4}")
    A(f"s_waitcnt vmcnt({D + 4*BT}) lgkmcnt(0)")
    STAMP(1)
    A("s_barrier")
    read_q()
    STAMP(2)
    def mk_pre(X):
        def pre_k(step):
            js = list(range(step + X[step-1], step + X[step] + 1))
            def adv(j):
                A(f"v_add_u32 v{vOff}, {inc(j//4-1)}, v{vOff}")
                A(f"s_add_u32 s{sCnt2}, s{sCnt2}, 1"); A(f"s_cmp_eq_u32 s{sCnt2}, 64"); A("s_cmov_b64 s[32:33], s[36:37]")
            if js and js[0] % 4 == 0: adv(js[0])
            A(f"s_waitcnt vmcnt({X[step-1]-1})")
            for j in js:
                if j % 4 == 0 and j != js[0]: adv(j)
                ring_load(j)
        return pre_k
    pre_k = mk_pre(Dk)
    if BT:
        ktile(pre_k, 0, BT * 16)
        for t in range(BT): ktile(lambda st: None, 4 * t, t * 16, vBk)
        ktile(pre_k, 4, BT * 16 + 16)
        A(f"v_add_u32 v{vSa}, {BT*16 + 32}, v{vSa}")
    if CKK: A(f"v_mov_b32 v111, {DU+8}")
    def kbody(pre):
        A(f"ds_read_b64 v[{vZm}:{vZm+1}], v{vZa}")
        ktile(pre, 0, 0)
        if CKK: A("ds_read_b32 v110, v111")
        ktile(pre, 4, 16)
    L.append(".p2align 6")
    LB("L_kloop")
    kbody(pre_k)
    LB("L_knext")
    A(f"v_add_u32 v{vSa}, 32, v{vSa}")
    if CKK:
        A("s_waitcnt lgkmcnt(1)")
        A(f"v_readfirstlane_b32 s{sT0}, v110")
    A(f"s_sub_u32 s{sCnt}, s{sCnt}, 1"); A(f"s_cmp_eq_u32 s{sCnt}, 0"); A("s_cbranch_scc1 L_kend")
    A(f"ds_write_b32 v{vPr}, v{vOff}")
    if stamp:
        A(f"s_cmp_lg_u32 s{sCnt}, 16"); A(f"s_cbranch_scc1 L_kns")
        STAMP(6)
        LB("L_kns")
    if CKK:
        A(f"s_cmp_le_i32 s{sCnt}, s{sT0}"); A("s_cbranch_scc1 L_kloop")
        kbody(mk_pre([int(c) for c in Dkd]))
        A("s_branch L_knext")
    else:
        A("s_branch L_kloop")
    LB("L_kend")
    A(f"v_lshrrev_b32 v{vT1}, 4, v{vLane}"); A(f"v_mul_u32_u24 v{vT1}, {GS}, v{vT1}")
    A(f"v_and_b32 v{vT0}, 15, v{vLane}"); A(f"v_lshl_add_u32 v{vT0}, v{vT0}, 2, v{vT1}")
    A(f"s_mul_i32 s{sT1}, s{sA}, {4*GS}"); A(f"s_add_u32 s{sT1}, s{sT1}, {SC}")
    A(f"v_add_u32 v{vSa}, s{sT1}, v{vT0}")
    A(f"s_mov_b32 s{sCnt}, {spin}")
    LB("L_zchk")
    A("s_waitcnt lgkmcnt(0)")
    A(f"v_readfirstlane_b32 s{sT0}, v{vZm+1}"); nop(2)
    A(f"s_cmp_eq_u32 s{sT0}, 1"); A("s_cbranch_scc1 L_zok")
    A(f"ds_read_b64 v[{vZm}:{vZm+1}], v{vZa}")
    A(f"s_sub_u32 s{sCnt}, s{sCnt}, 1"); A(f"s_cmp_lg_u32 s{sCnt}, 0"); A("s_cbranch_scc1 L_zchk")
    LB("L_zok")
    A(f"ds_read_b32 v{vX}, v{vSa}")
    A(f"ds_read_b32 v{vSn}, v{vSa} offset:64")
    A(f"v_max_f32 v{vMc}, v{vMc}, v{vZm}")
    wave_max(vMc, sT2)
    A(f"v_mov_b32 v{vMc}, s{sT2}")
    A(f"v_mul_f32 v{vMc}, s{sC}, v{vMc}")
    A(f"s_lshl_b32 s{sT0}, s{sA}, 2"); A(f"s_add_u32 s{sT0}, s{sT0}, {MW}"); A(f"v_mov_b32 v{vT0}, s{sT0}")
    A("s_waitcnt lgkmcnt(1)")
    A(f"v_fma_f32 v{vX}, v{vX}, s{sC}, -v{vMc}")
    A(f"v_exp_f32 v{vX}, v{vX}")
    A(f"ds_write_b32 v{vT0}, v{vMc}")
    A(f"v_cvt_pk_bf16_f32 v{vPP}, v{vX}, v{vX}")
    if NEe:
        A(f"s_getreg_b32 s{sT0}, hwreg(HW_REG_XCC_ID, 0, 1)")
        A(f"s_cmp_eq_u32 s{sT0}, 0"); A(f"s_cselect_b32 s{sCnt2}, {NEe-1}, {NE-1}")
        A(f"s_sub_u32 s{sCnt}, 15, s{sCnt2}")
    else:
        A(f"s_mov_b32 s{sCnt}, {16-NE}"); A(f"s_mov_b32 s{sCnt2}, {NE-1}")
    A(f"v_add_u32 v{vSa}, 128, v{vSa}")
    if ctl: A(f"v_mov_b32 v{vZa}, {DU}")
    STAMP(7)
    def build_B(i):
        b = vB[i & 1]
        for r in range(4):
            A(f"v_and_b32_dpp v{b+r}, v{vPP}, v{vMask[r]} row_newbcast:{i} {DPPF}")
    build_B(0)
    def vslot(j):
        j %= 16
        return vRing + 4 * j if j < 8 else vBk + 4 * (j - 8)
    def vload(j):
        r = vslot(j)
        A(f"buffer_load_dwordx4 v[{r}:{r+3}], v{vOff}, s[32:35], {so(j%4)} offen offset:{pos[j%4]} {kf}")
    def vbody(depth, prev, last):
        A(f"ds_write_b32 v{vPr}, v{vOff}")
        for i in range(16):
            dp = prev if i == 0 else depth(i - 1)
            js = list(range(i + dp, i + depth(i) + 1))
            if last: js = [j for j in js if j < 16]
            issued = min(i + dp, 16) if last else i + dp
            if js and js[0] % 4 == 0: A(f"v_add_u32 v{vOff}, {inc(js[0]//4-1)}, v{vOff}")
            A(f"s_waitcnt vmcnt({issued - i - 1})")
            for j in js:
                if j % 4 == 0 and j != js[0]: A(f"v_add_u32 v{vOff}, {inc(j//4-1)}, v{vOff}")
                vload(j)
            if not js: nop(1)
            v = vslot(i); b = vB[i & 1]
            A(f"v_mfma_f32_16x16x32_bf16 v[{vD}:{vD+3}], v[{v}:{v+3}], v[{b}:{b+3}], v[{vD}:{vD+3}]")
            if i == 12 and not last:
                A("s_waitcnt lgkmcnt(0)")
                A(f"v_fma_f32 v{vX}, v{vSn}, s{sC}, -v{vMc}")
                if ctl: A(f"ds_read_b64 v[{vZm}:{vZm+1}], v{vZa}")
                A(f"ds_read_b32 v{vSn}, v{vSa}")
                A(f"v_exp_f32 v{vX}, v{vX}")
                A(f"v_add_u32 v{vSa}, 64, v{vSa}")
            if i < 15: build_B(i + 1)
            if i == 14 and not last: A(f"v_cvt_pk_bf16_f32 v{vPP}, v{vX}, v{vX}")
        if not last: build_B(0)
    L.append(".p2align 6")
    LB("L_vloop")
    vbody(lambda i: Dv[i % 8], D, False)
    if ctl:
        LB("L_vnext")
        A("s_waitcnt lgkmcnt(1)")
        A(f"v_readfirstlane_b32 s{sT0}, v{vZm}")
        if TS is not None: A(f"v_readfirstlane_b32 s{sT1}, v{vZm+1}")
        A(f"s_sub_u32 s{sCnt}, s{sCnt}, 1"); A(f"s_cmp_eq_u32 s{sCnt}, 0"); A("s_cbranch_scc1 L_vdone")
        if TS is not None:
            A(f"s_cmp_gt_i32 s{sCnt}, s{sT1}"); A("s_cbranch_scc1 L_vslow")
        A(f"s_cmp_le_i32 s{sCnt}, s{sT0}"); A("s_cbranch_scc1 L_vloop")
        vbody(lambda i: min(DB, D + 15 - i), D, False)
        A("s_branch L_vnext")
        if TS is not None:
            LB("L_vslow")
            vbody(lambda i: int(slow[i]), D, False)
            A("s_branch L_vnext")
        if lay: L.append(".p2align 12")
        LB("L_vdone")
        if stamp == 4: STAMP(6)
    else:
        A(f"s_sub_u32 s{sCnt}, s{sCnt}, 1"); A(f"s_cmp_lg_u32 s{sCnt}, 0"); A("s_cbranch_scc1 L_vloop")
    De = DE if DE else D
    Dm = D2 if D2 else De
    def deepen(lo, hi):
        for j in range(lo, hi):
            if j % 4 == 0: A(f"v_add_u32 v{vOff}, {inc(j//4-1)}, v{vOff}")
            vload(j)
    deepen(D, Dm)
    if max(NE, NEe) > 1:
        A(f"s_cmp_eq_u32 s{sCnt2}, 0"); A("s_cbranch_scc1 L_vlast")
        LB("L_vloop2")
        vbody(lambda i: Dm, Dm, False)
        A(f"s_sub_u32 s{sCnt2}, s{sCnt2}, 1"); A(f"s_cmp_lg_u32 s{sCnt2}, 0"); A("s_cbranch_scc1 L_vloop2")
        LB("L_vlast")
    deepen(Dm, De)
    if t1:
        A(f"v_mov_b32 v{vT0}, {FW}"); A(f"s_lshl_b32 s{sT0}, s{sA}, 2"); A(f"v_add_u32 v{vT1}, s{sT0}, v{vT0}")
        A(f"s_mov_b32 s{sCnt}, {spin}")
        LB("L_fchk")
        A(f"ds_read_b32 v{vZm}, v{vT0} offset:20")
        A(f"ds_read_b32 v{vZm+1}, v{vT1}")
        A("s_waitcnt lgkmcnt(0)")
        A(f"v_readfirstlane_b32 s{sT0}, v{vZm}"); nop(2)
        A(f"s_cmp_eq_u32 s{sT0}, 1"); A("s_cbranch_scc1 L_fok")
        A(f"s_sub_u32 s{sCnt}, s{sCnt}, 1"); A(f"s_cmp_lg_u32 s{sCnt}, 0"); A("s_cbranch_scc1 L_fchk")
        LB("L_fok")
        A(f"v_lshrrev_b32 v{vT0}, 4, v{vLane}"); A(f"v_and_b32 v{vT1}, 7, v{vLane}"); A(f"v_lshl_add_u32 v{vT0}, v{vT0}, 3, v{vT1}")
        A(f"s_mul_i32 s{sT0}, s{sA}, 272"); A(f"s_add_u32 s{sT0}, s{sT0}, {ST}")
        A(f"v_lshl_add_u32 v{vSt}, v{vT0}, 3, s{sT0}")
    else:
        A(f"s_lshl_b32 s{sT0}, s{sA}, 10"); A(f"s_add_u32 s{sT0}, s{sT0}, {ST}")
        A(f"v_add_u32 v{vSt}, s{sT0}, v{vSt}")
    srd(40, 28, 29, None, 0x200000)
    srd(44, 24, 25, None, 4096)
    vbody(lambda i: De, De, True)
    LB("L_vend")
    STAMP(3)
    if t1:
        nop(6)
        A("s_mov_b32 exec_lo, 0x00ff00ff"); A("s_mov_b32 exec_hi, 0x00ff00ff")
        for r in range(4): A(f"v_mul_f32 v{vD+r}, v{vD+r}, v{vZm+1}")
        A(f"v_cvt_pk_bf16_f32 v{vD}, v{vD}, v{vD+1}"); A(f"v_cvt_pk_bf16_f32 v{vD+1}, v{vD+2}, v{vD+3}")
        A(f"ds_write_b64 v{vSt}, v[{vD}:{vD+1}]")
        A("s_mov_b64 exec, -1")
    else:
        nop(8)
        A(f"ds_write2_b32 v{vSt}, v{vD}, v{vD+1} offset0:0 offset1:16")
        A(f"ds_write2_b32 v{vSt}, v{vD+2}, v{vD+3} offset0:32 offset1:48")
    A("s_waitcnt lgkmcnt(0)")
    A("s_barrier")
    if dry:
        A("s_cmp_gt_u32 s3, 1"); A("s_cbranch_scc1 L_fin")
        A("s_cmp_lg_u32 s3, 0"); A("s_cbranch_scc1 L_got0")
    else:
        A("s_cmp_lg_u32 s3, 0"); A("s_cbranch_scc1 L_fin")
    if cons == 1:
        A(f"s_lshl_b32 s{sT0}, s{sB}, 17")
        A(f"s_and_b32 s{sT1}, s{sCo}, 63"); A(f"s_lshl_b32 s{sT1}, s{sT1}, 5"); A(f"s_add_u32 s{sT0}, s{sT0}, s{sT1}")
        srd(40, 28, 29, None, 0x200000)
        A(f"v_lshl_add_u32 v{vT0}, v{vLane}, 11, s{sT0}")
        A(f"v_lshlrev_b32 v{vT1}, 4, v{vLane}"); A(f"v_add_u32 v{vT1}, {GB}, v{vT1}")
        A(f"ds_read_b128 v[{vW+16}:{vW+19}], v{vT1}")
        A(f"s_mov_b32 s{sCnt}, {spin}")
        A(f"s_mov_b32 s{sT1}, 0x0c0c0400"); A(f"s_mov_b32 s{sT2}, 0x05040100")
        A(f"s_add_u32 s{sTag}, s{sTag}, 1"); A(f"s_and_b32 s{sTag}, s{sTag}, 0xffff"); A(f"s_mul_i32 s{sOff}, s{sTag}, 0x10001")
        srd(44, 24, 25, None, 4096)
        sets = [vRing + 8 * k for k in range(NP)]
        def pissue(y):
            A(f"buffer_load_dwordx4 v[{y}:{y+3}], v{vT0}, s[40:43], 0 offen {pollf}")
            A(f"buffer_load_dwordx4 v[{y+4}:{y+7}], v{vT0}, s[40:43], 0 offen offset:16 {pollf}")
        for k in range(NP):
            A(f"s_mov_b64 s[{80+2*k}:{81+2*k}], -1")
            pissue(sets[k])
            if k < NP - 1 and stag: A(f"s_sleep {stag}")
        A("s_waitcnt lgkmcnt(0)")
        LB("L_poll")
        for k in range(NP):
            y = sets[k]
            A(f"s_mov_b64 exec, s[{80+2*k}:{81+2*k}]")
            A(f"s_waitcnt vmcnt({2*(NP-1)})")
            A(f"v_perm_b32 v{vT1}, v{y+1}, v{y}, s{sT1}")
            A(f"v_perm_b32 v{vT2}, v{y+5}, v{y+4}, s{sT1}")
            A(f"v_perm_b32 v{vT1}, v{vT2}, v{vT1}, s{sT2}")
            A(f"v_cmp_ne_u32 vcc, s{sOff}, v{vT1}")
            A(f"s_cbranch_vccz L_got{k}" if 'p' not in dis else f"s_branch L_got{k}")
            A("s_mov_b64 exec, vcc")
            A(f"s_mov_b64 s[{80+2*k}:{81+2*k}], vcc")
            if sleep: A(f"s_sleep {sleep}")
            pissue(y)
        A(f"s_sub_u32 s{sCnt}, s{sCnt}, 1"); A(f"s_cmp_lg_u32 s{sCnt}, 0"); A("s_cbranch_scc1 L_poll")
        A("s_waitcnt vmcnt(0)")
        for k in range(NP):
            y = sets[k]
            LB(f"L_got{k}")
            A("s_mov_b64 exec, -1")
            STAMP(4)
            A(f"v_perm_b32 v{vT1}, v{y+3}, v{y+2}, s{sT1}")
            A(f"v_perm_b32 v{vT2}, v{y+7}, v{y+6}, s{sT1}")
            A(f"v_perm_b32 v{vT2}, v{vT2}, v{vT1}, s{sT2}")
            A(f"v_and_b32 v{y}, 0xffffff00, v{y}"); A(f"v_and_b32 v{y+1}, 0xffffff00, v{y+1}")
            A(f"v_sub_f32_dpp v{vT1}, v{vT2}, v{vT2} quad_perm:[1,0,3,2] {DPPF}")
            A(f"v_exp_f32 v{vT1}, v{vT1}"); A(f"v_and_b32 v{y+4}, 0xffffff00, v{y+4}")
            A(f"v_add_f32 v{vT1}, 1.0, v{vT1}")
            A(f"v_rcp_f32 v{vT1}, v{vT1}"); A(f"v_and_b32 v{y+5}, 0xffffff00, v{y+5}")
            for e in range(8): A(f"v_mul_f32 v{vW+e}, v{y+e}, v{vT1}")
            if k < NP - 1: A("s_branch L_red")
        LB("L_red")
        reduce8(vW)
        if mimic:
            round_bf16(vW)
            A(f"v_mul_f32 v{vW}, v{vW}, v{vW+16}")
            round_bf16(vW)
            A(f"v_add_f32 v{vW}, v{vW}, v{vW+17}")
        else:
            A(f"v_fma_f32 v{vW}, v{vW}, v{vW+16}, v{vW+17}")
        A(f"v_cvt_pk_bf16_f32 v{vW}, v{vW}, v{vW}")
        A("s_mov_b32 exec_lo, 0x01010101"); A("s_mov_b32 exec_hi, 0x01010101")
        A(f"buffer_store_short v{vW}, v{vW+19}, s[44:47], 0 offen {outf}")
    else:
        A(f"s_lshl_b32 s{sT0}, s{sB}, {17+pad}")
        A(f"s_and_b32 s{sT1}, s{sCo}, 63"); A(f"s_lshl_b32 s{sT1}, s{sT1}, {5+pad}"); A(f"s_add_u32 s{sT0}, s{sT0}, s{sT1}")
        A(f"v_lshrrev_b32 v{vT0}, 1, v{vLane}"); A(f"v_lshl_add_u32 v{vT0}, v{vT0}, {11+pad}, s{sT0}")
        A(f"v_and_b32 v{vT2}, 1, v{vLane}"); A(f"v_lshl_add_u32 v{vT0}, v{vT2}, 4, v{vT0}")
        A(f"s_mov_b32 s84, {0x10000 << pad}")
        vSel = vRing + 8 * NP
        def pissue2(k):
            Y0, Y1 = vRing + 8 * k, vRing + 8 * k + 4
            A(f"buffer_load_dwordx4 v[{Y0}:{Y0+3}], v{vT0}, s[40:43], 0 offen {pollf}")
            A(f"buffer_load_dwordx4 v[{Y1}:{Y1+3}], v{vT0}, s[40:43], s84 offen {pollf}")
        pissue2(0)
        A(f"v_and_b32 v{vT1}, 0x30, v{vLane}"); A(f"v_lshl_add_u32 v{vT1}, v{vT2}, 3, v{vT1}")
        A(f"v_lshlrev_b32 v{vT1}, 4, v{vT1}"); A(f"v_add_u32 v{vT1}, {GB}, v{vT1}")
        A(f"ds_read_b128 v[{vW+16}:{vW+19}], v{vT1}")
        A(f"v_cmp_eq_u32 vcc, 1, v{vT2}")
        A(f"v_mov_b32 v{vSel}, 0x0c0c0400"); A(f"v_mov_b32 v{vT1}, 0x04000c0c")
        A(f"v_cndmask_b32 v{vSel}, v{vSel}, v{vT1}, vcc")
        A(f"s_mov_b32 s{sCnt}, {spin}")
        A(f"s_mov_b32 s{sT1}, 0x0c0c0400")
        A(f"s_add_u32 s{sTag}, s{sTag}, 1"); A(f"s_and_b32 s{sTag}, s{sTag}, 0xffff")
        for k in range(1, NP):
            A(f"s_sleep {stag}"); pissue2(k)
        A("s_waitcnt lgkmcnt(0)")
        LB("L_poll")
        for k in range(NP):
            Y0, Y1 = vRing + 8 * k, vRing + 8 * k + 4
            A("s_mov_b64 exec, -1")
            A(f"s_waitcnt vmcnt({2*(NP-1)})")
            A(f"v_perm_b32 v{vT1}, v{Y0+1}, v{Y0}, s{sT1}")
            A(f"v_perm_b32 v{vT2}, v{Y1+1}, v{Y1}, s{sT1}")
            A(f"v_cmp_ne_u32 s[80:81], s{sTag}, v{vT1}")
            A(f"v_cmp_ne_u32 s[82:83], s{sTag}, v{vT2}")
            A("s_or_b64 vcc, s[80:81], s[82:83]")
            A(f"s_cbranch_scc0 L_got{k}" if 'p' not in dis else f"s_branch L_got{k}")
            if sleep: A(f"s_sleep {sleep}")
            if NP == 1:
                A("s_mov_b64 exec, s[80:81]"); A("s_cbranch_execz L_p1")
                A(f"buffer_load_dwordx4 v[{Y0}:{Y0+3}], v{vT0}, s[40:43], 0 offen {pollf}")
                LB("L_p1")
                A("s_mov_b64 exec, s[82:83]"); A("s_cbranch_execz L_p2")
                A(f"buffer_load_dwordx4 v[{Y1}:{Y1+3}], v{vT0}, s[40:43], s84 offen {pollf}")
                LB("L_p2")
            else:
                A("s_mov_b64 exec, vcc")
                pissue2(k)
        A(f"s_sub_u32 s{sCnt}, s{sCnt}, 1"); A(f"s_cmp_lg_u32 s{sCnt}, 0"); A("s_cbranch_scc1 L_poll")
        A("s_mov_b64 exec, -1")
        A("s_waitcnt vmcnt(0)")
        for k in range(NP):
            Y0, Y1 = vRing + 8 * k, vRing + 8 * k + 4
            LB(f"L_got{k}")
            STAMP(4)
            A(f"v_perm_b32 v{vT1}, v{Y0+3}, v{Y0+2}, v{vSel}")
            A(f"v_perm_b32 v{vT2}, v{Y1+3}, v{Y1+2}, v{vSel}")
            A(f"v_and_b32 v{Y0}, 0xffffff00, v{Y0}")
            A(f"v_or_b32_dpp v{vT1}, v{vT1}, v{vT1} quad_perm:[1,0,3,2] {DPPF}")
            A(f"v_or_b32_dpp v{vT2}, v{vT2}, v{vT2} quad_perm:[1,0,3,2] {DPPF}")
            A(f"v_and_b32 v{Y0+1}, 0xffffff00, v{Y0+1}")
            A(f"v_sub_f32_dpp v{vT1}, v{vT1}, v{vT1} quad_perm:[2,3,0,1] {DPPF}")
            A(f"v_sub_f32_dpp v{vT2}, v{vT2}, v{vT2} quad_perm:[2,3,0,1] {DPPF}")
            A(f"v_exp_f32 v{vT1}, v{vT1}"); A(f"v_exp_f32 v{vT2}, v{vT2}")
            A(f"v_and_b32 v{Y1}, 0xffffff00, v{Y1}")
            A(f"v_add_f32 v{vT1}, 1.0, v{vT1}"); A(f"v_add_f32 v{vT2}, 1.0, v{vT2}")
            A(f"v_rcp_f32 v{vT1}, v{vT1}"); A(f"v_rcp_f32 v{vT2}, v{vT2}")
            A(f"v_and_b32 v{Y1+1}, 0xffffff00, v{Y1+1}")
            for r in range(4): A(f"v_mul_f32 v{vW+r}, v{Y0+r}, v{vT1}")
            for r in range(4): A(f"v_fmac_f32 v{vW+r}, v{Y1+r}, v{vT2}")
            if k < NP - 1: A("s_branch L_red")
        LB("L_red")
        A(f"v_permlane32_swap_b32 v{vW}, v{vW+1}")
        nop(1)
        A(f"v_permlane32_swap_b32 v{vW+2}, v{vW+3}")
        A(f"v_add_f32 v{vW}, v{vW}, v{vW+1}"); A(f"v_add_f32 v{vW+2}, v{vW+2}, v{vW+3}")
        nop(2)
        A(f"v_permlane16_swap_b32 v{vW}, v{vW+2}")
        A(f"v_add_f32 v{vW}, v{vW}, v{vW+2}"); nop(2)
        A(f"v_add_f32_dpp v{vW}, v{vW}, v{vW} row_ror:8 {DPPF}"); nop(2)
        A(f"v_add_f32_dpp v{vW}, v{vW}, v{vW} row_ror:4 {DPPF}")
        if dry: A("s_cmp_lg_u32 s3, 0"); nop(1)
        else: nop(2)
        A(f"v_add_f32_dpp v{vW}, v{vW}, v{vW} quad_perm:[2,3,0,1] {DPPF}")
        if dry: A("s_mov_b32 exec_lo, 0x00030003"); A("s_mov_b32 exec_hi, 0x00030003")
        if mimic:
            round_bf16(vW)
            A(f"v_mul_f32 v{vW}, v{vW}, v{vW+16}")
            round_bf16(vW)
            A(f"v_add_f32 v{vW}, v{vW}, v{vW+17}")
        else:
            A(f"v_fma_f32 v{vW}, v{vW}, v{vW+16}, v{vW+17}")
        A(f"v_cvt_pk_bf16_f32 v{vW}, v{vW}, v{vW}")
        if dry: A("s_cbranch_scc1 L_fin")
        else: A("s_mov_b32 exec_lo, 0x00030003"); A("s_mov_b32 exec_hi, 0x00030003")
        A(f"buffer_store_short v{vW}, v{vW+19}, s[44:47], 0 offen {outf}")
    A(f"s_and_b32 s{sT1}, s{sRow}, 63"); A("s_cbranch_scc1 L_noe")
    A(f"s_lshl_b32 s{sT0}, s{sB}, 8"); A(f"s_add_u32 s{sT0}, s{sT0}, {EOFF:#x}")
    A("s_mov_b64 exec, 1")
    A(f"v_mov_b32 v{vT0}, s{sT0}"); A(f"v_mov_b32 v{vT1}, s{sTag}")
    A(f"buffer_store_dword v{vT1}, v{vT0}, s[40:43], 0 offen {outf}")
    LB("L_noe")
    A("s_mov_b64 exec, -1")
    LB("L_fin")
    STAMP(5)
    dump_stamps()
    A("s_endpgm")

    L.append(".p2align 6")
    LB("L_aux")
    vG16, vN = vU, vU + 1
    A(f"v_lshrrev_b32 v{vG16}, 4, v{vLane}"); A(f"v_and_b32 v{vN}, 15, v{vLane}")
    vQo, vX0 = 110, vU + 2
    sJ = 68
    A(f"s_bfe_u32 s{sJ}, s2, 0x30003")
    if not pf: A(f"s_mov_b32 s{sJ}, 0")
    A(f"v_lshlrev_b32 v{vT0}, 13, v{vG16}"); A(f"v_lshl_add_u32 v{vOff}, v{vN}, 4, v{vT0}")
    A(f"s_lshl_b32 s{sT0}, s{sA}, 20"); A(f"v_add_u32 v{vQo}, s{sT0}, v{vOff}")
    A(f"s_lshl_b32 s{sT0}, s{sJ}, 2")
    A(f"v_add_u32 v{vT1}, s{sT0}, v{vN}"); A(f"v_add_u32 v{vT2}, 16, v{vT1}")
    A(f"v_and_b32 v{vT1}, 31, v{vT1}"); A(f"v_and_b32 v{vT2}, 31, v{vT2}")
    A(f"v_lshl_add_u32 v{vT1}, v{vT1}, 2, v{vG16}"); A(f"v_lshl_add_u32 v{vT2}, v{vT2}, 2, v{vG16}")
    A(f"v_lshlrev_b32 v{vT1}, 1, v{vT1}"); A(f"v_lshlrev_b32 v{vT2}, 1, v{vT2}")
    A(f"s_lshl_b32 s{sT0}, s{sH}, 8")
    A(f"s_lshl_b32 s{sOff}, s{sJ}, 17")
    A(f"s_lshl_b32 s{sT1}, s{sB}, 10"); A(f"s_lshl_b32 s{sT2}, s{sA}, 8"); A(f"s_add_u32 s{sT1}, s{sT1}, s{sT2}")
    A("s_waitcnt lgkmcnt(0)")
    srd(48, 4, 5, None, 4096)
    A(f"s_add_u32 s40, s10, s{sT0}"); A("s_addc_u32 s41, s11, 0"); A(f"s_sub_u32 s42, 0x400000, s{sT0}"); A("s_mov_b32 s43, 0x20000")
    STAMP(0)
    def wq_load(i):
        r = vBig + 4 * i
        A(f"buffer_load_dwordx4 v[{r}:{r+3}], v{vQo}, s[40:43], s{sOff} offen {p1 if pf == 1 and i < 4 else (pq if pf == 2 else p2)}")
        if i < 31: A(f"s_add_u32 s{sOff}, s{sOff}, 32768"); A(f"s_and_b32 s{sOff}, s{sOff}, 0xfffff")
    A(f"buffer_load_ushort v{vX0}, v{vT1}, s[48:51], s{sT1} offen {xf}")
    A(f"buffer_load_ushort v{vX0+1}, v{vT2}, s[48:51], s{sT1} offen {xf}")
    first = [WQ, 4, 0][pf]
    for i in range(first): wq_load(i)
    if pf == 1:
        A(f"s_lshl_b32 s{sT0}, s{sH}, 17")
        srd(36, 12, 13, f"s{sT0}", 0x20000)
        A(f"s_lshl_b32 s{sT0}, s{sJ}, 14"); A(f"s_lshl_b32 s{sT1}, s{sA}, 12"); A(f"s_add_u32 s{sT0}, s{sT0}, s{sT1}")
        A(f"v_lshl_add_u32 v{vT0}, v{vLane}, 4, s{sT0}")
        for i in range(4): A(f"buffer_load_dwordx4 v[112:115], v{vT0}, s[36:39], 0 offen offset:{i*1024} {p1}")
    if pff and pf == 1:
        A(f"s_lshr_b32 s{sT2}, s2, 3"); A(f"s_lshl_b32 s{sT2}, s{sT2}, 2"); A(f"s_add_u32 s{sT2}, s{sT2}, s{sA}")
        A(f"s_and_b32 s{sT1}, s2, 3"); A(f"s_mul_i32 s{sT0}, s{sT1}, {128*2752}")
        A("s_bitcmp1_b32 s2, 2")
        A("s_cselect_b32 s36, s18, s16"); A("s_cselect_b32 s37, s19, s17")
        A(f"s_add_u32 s36, s36, s{sT0}"); A("s_addc_u32 s37, s37, 0"); A(f"s_mov_b32 s38, {128*2752}")
        A(f"s_mul_i32 s{sT0}, s{sT2}, 3072")
        A(f"v_lshl_add_u32 v{vT0}, v{vLane}, 4, s{sT0}")
        for i in range(3): A(f"buffer_load_dwordx4 v[112:115], v{vT0}, s[36:39], 0 offen offset:{i*1024} {p1}")
        srd(32, 20, 21, None, 1376 * 1024)
        A(f"s_lshr_b32 s{sT0}, s{sT2}, 4"); A(f"s_lshl_b32 s{sT0}, s{sT0}, 18")
        A(f"s_and_b32 s{sT2}, s{sT2}, 15"); A(f"s_lshl_b32 s{sT2}, s{sT2}, 13"); A(f"s_add_u32 s{sT0}, s{sT0}, s{sT2}")
        A(f"s_bfe_u32 s{sT2}, s2, 0x10002"); A(f"s_lshl_b32 s{sT2}, s{sT2}, 17"); A(f"s_add_u32 s{sT0}, s{sT0}, s{sT2}")
        A(f"s_lshl_b32 s{sT1}, s{sT1}, 8"); A(f"s_add_u32 s{sT0}, s{sT0}, s{sT1}")
        A(f"v_lshl_add_u32 v{vT0}, v{vN}, 4, s{sT0}"); A(f"v_lshl_add_u32 v{vT0}, v{vG16}, 11, v{vT0}")
        for i in range(2): A(f"buffer_load_dwordx4 v[112:115], v{vT0}, s[32:35], 0 offen offset:{i*1024} {p1}")
    A(f"s_mov_b32 s{sT0}, {EOFF:#x}")
    A(f"s_add_u32 s30, s28, s{sT0}"); A("s_addc_u32 s31, s29, 0")
    for b_ in range(4): A(f"s_load_dword s{sE+b_}, s[30:31], {b_*256}")
    make_masks(); init_state()
    A(f"s_lshl_b32 s{sT0}, s{sA}, 3"); A(f"s_add_u32 s{sT0}, s{sT0}, {ZM}"); A(f"v_mov_b32 v{vU+5}, s{sT0}")
    A(f"ds_write_b64 v{vU+5}, v[{vMc}:{vL}]")
    A(f"v_mov_b32 v111, {FW}"); A(f"ds_write_b32 v111, v{vL} offset:20")
    if ctl:
        A(f"v_mov_b32 v111, {DU}"); A("v_mov_b32 v109, 64")
        A("ds_write_b32 v111, v109"); A("ds_write_b32 v111, v109 offset:4"); A("ds_write_b32 v111, v109 offset:8")
    if pf == 2:
        A("s_waitcnt vmcnt(0)")
        if stamp == 1: STAMP(7)
        for i in range(WQ): wq_load(i)
    elif pf:
        A(f"s_waitcnt vmcnt({pfw})")
        if stamp == 1: STAMP(7)
        for i in range(4, 4 + WQ): wq_load(i)
    else:
        A(f"s_waitcnt vmcnt({WQ})")
    A(f"v_lshl_or_b32 v{vX0}, v{vX0}, 16, v{vX0}"); A(f"v_lshl_or_b32 v{vX0+1}, v{vX0+1}, 16, v{vX0+1}")
    nop(1)
    for i in range(32):
        b = vB[i & 1]; r = vBig + 4 * i
        for rr in range(4):
            A(f"v_and_b32_dpp v{b+rr}, v{vX0+(i>>4)}, v{vMask[rr]} row_newbcast:{i&15} {DPPF}")
        if pf == 1 and i < 4:
            nop(2)
        else:
            A(f"s_waitcnt vmcnt({min(WQ-1, 31-i)})")
            if i + WQ < 32: wq_load(i + WQ)
            else: nop(1)
        A(f"v_mfma_f32_16x16x32_bf16 v[{vD}:{vD+3}], v[{r}:{r+3}], v[{b}:{b+3}], v[{vD}:{vD+3}]")
    A(f"s_lshl_b32 s{sT0}, s{sA}, 10"); A(f"s_add_u32 s{sT0}, s{sT0}, {QP}")
    A(f"v_add_u32 v{vT0}, s{sT0}, v{vSt}")
    nop(6)
    A(f"ds_write2_b32 v{vT0}, v{vD}, v{vD+1} offset0:0 offset1:16")
    A(f"ds_write2_b32 v{vT0}, v{vD+2}, v{vD+3} offset0:32 offset1:48")
    A("s_waitcnt lgkmcnt(0)")
    STAMP(1)
    A("s_barrier")
    for b_ in range(4):
        A(f"s_add_u32 s{sE+b_}, s{sE+b_}, 1"); A(f"s_and_b32 s{sE+b_}, s{sE+b_}, 0xffff")
    A(f"s_mov_b32 s{sTag}, s{sE}")
    for b_ in range(1, 4):
        A(f"s_cmp_eq_u32 s{sB}, {b_}"); A(f"s_cmov_b32 s{sTag}, s{sE+b_}")
    srd(44, 28, 29, None, 0x200000)
    read_q()
    STAMP(2)
    vZ = vU + 4
    score_addr()
    A(f"s_lshl_b32 s{sT0}, s{sA}, 12")
    A(f"v_lshl_add_u32 v{vZ}, v{vLane}, 4, s{sT0}")
    A(f"s_mov_b32 s{sCnt}, {ZT//2}")
    LB("L_zloop")
    A("s_waitcnt lgkmcnt(0)")
    for j in range(8):
        r = vRing + 4 * j
        A(f"ds_read_b128 v[{r}:{r+3}], v{vZ} offset:{(j//4)*16384 + pos[j%4]}")
    def pre_aux(step):
        A(f"s_waitcnt lgkmcnt({7-step if step < 4 else 8-step})")
    ktile(pre_aux, 0, 0)
    ktile(pre_aux, 4, 16)
    A(f"v_add_u32 v{vZ}, 0x8000, v{vZ}")
    A(f"v_add_u32 v{vSa}, 32, v{vSa}")
    A(f"s_sub_u32 s{sCnt}, s{sCnt}, 1"); A(f"s_cmp_lg_u32 s{sCnt}, 0"); A("s_cbranch_scc1 L_zloop")
    wave_max(vMc, sT2)
    A(f"v_mov_b32 v{vMc}, s{sT2}"); A(f"v_mov_b32 v{vL}, 1")
    A(f"ds_write_b64 v{vU+5}, v[{vMc}:{vL}]")
    A(f"s_lshl_b32 s{sT0}, s{sH}, 17")
    srd(40, 12, 13, f"s{sT0}", 0x20000)
    A(f"s_lshl_b32 s{sT1}, s{sA}, 8")
    if t1:
        A(f"v_lshl_add_u32 v{vOff}, v{vN}, 4, s{sT1}"); A(f"v_lshl_add_u32 v{vOff}, v{vG16}, 11, v{vOff}")
    else:
        A(f"v_add_u32 v{vOff}, s{sT1}, v{vOff}")
    for kb in range(4):
        for j in range(8):
            r = vBig + (kb * 8 + j) * 4
            if t1: A(f"s_mov_b32 s{sOff}, {kb*32768 + (j&3)*8192}")
            elif j % 4 == 0: A(f"s_mov_b32 s{sOff}, {kb*32768 + (j>>2)*4096}")
            if kb * 8 + j >= WP: A(f"s_waitcnt vmcnt({WP-1})")
            A(f"buffer_load_dwordx4 v[{r}:{r+3}], v{vOff}, s[40:43], s{sOff} offen offset:{(j>>2)*1024 if t1 else (j&3)*1024} {p2}")
    A(f"s_mov_b32 s{sSelLo}, 0x05040100"); A(f"s_mov_b32 s{sSelHi}, 0x07060302")
    def perm_block(src, dst):
        for e in range(8):
            for t in range(4):
                sel = sSelHi if e & 1 else sSelLo
                A(f"v_perm_b32 v{dst+4*e+t}, v{src+(2*t+1)*4+(e>>1)}, v{src+(2*t)*4+(e>>1)}, s{sel}")
    vKeep = 28
    A(f"v_mov_b32 v{vKeep}, v{vG16}"); A(f"v_mov_b32 v{vKeep+1}, v{vN}")
    vG16, vN = vKeep, vKeep + 1
    if stamp: A(f"v_mov_b32 v{vKeep+2}, v{vU+6}")
    stamp_reg[0] = vKeep + 2
    A("s_waitcnt vmcnt(0)")
    blocks = []
    dst = vSpare
    for kb in range(4):
        src = vBig + kb * 32
        perm_block(src, dst); blocks.append(dst); dst = src
    vAcc = dst
    STAMP(3)
    A(f"s_cmp_eq_u32 s{sA}, 0"); A("s_cbranch_scc1 L_wipe")
    A(f"s_cmp_eq_u32 s{sA}, 1"); A("s_cbranch_scc1 L_ffn")
    A(f"s_cmp_eq_u32 s{sA}, 2"); A("s_cbranch_scc1 L_gate")
    A("s_branch L_sum")
    if lay: L.append(".p2align 10")
    LB("L_join")
    vA1, vA2, vA3, vA4, vPub, vSh = 40, 41, 42, 43, 44, 45
    A(f"v_lshrrev_b32 v{vT0}, 2, v{vLane}"); A(f"v_lshlrev_b32 v{vT0}, 6, v{vT0}")
    A(f"v_and_b32 v{vT1}, 3, v{vLane}"); A(f"v_lshl_add_u32 v{vA1}, v{vT1}, 3, v{vT0}")
    A(f"v_add_u32 v{vA1}, {ST}, v{vA1}")
    A(f"v_mov_b32 v{vA2}, {FW}")
    A(f"s_lshl_b32 s{sT0}, s{sA}, 8"); A(f"s_add_u32 s{sT0}, s{sT0}, {OB}")
    A(f"v_lshl_add_u32 v{vA3}, v{vLane}, 2, s{sT0}")
    A(f"v_lshl_add_u32 v{vA4}, v{vG16}, 4, s{sT0}")
    if t1:
        A(f"v_and_b32 v{vT0}, 3, v{vN}"); A(f"v_mul_u32_u24 v{vT0}, 272, v{vT0}")
        A(f"v_lshl_add_u32 v{vA4}, v{vG16}, 4, v{vT0}"); A(f"v_add_u32 v{vA4}, {ST}, v{vA4}")
    A(f"s_lshl_b32 s{sT0}, s{sRow}, {11+pad}"); A(f"s_lshl_b32 s{sT1}, s{sA}, {9+pad}"); A(f"s_add_u32 s{sT0}, s{sT0}, s{sT1}")
    A(f"v_lshl_add_u32 v{vPub}, v{vN}, {5+pad}, s{sT0}"); A(f"v_lshl_add_u32 v{vPub}, v{vG16}, 4, v{vPub}")
    A(f"v_lshlrev_b32 v{vSh}, 4, v{vG16}")
    srd(32, 28, 29, None, 0 if 's' in dis else 0x100000)
    A(f"v_mov_b32 v80, s{sTag}"); A(f"v_lshrrev_b32 v81, 8, v80")
    A("s_mov_b32 s68, 0xffff0000"); A("s_mov_b32 s69, 0")
    A(f"s_mov_b32 s{sT2}, 0xffffff00")
    A("s_waitcnt vmcnt(0) lgkmcnt(0)")
    STAMP(4)
    A("s_barrier")
    vML, vO, vBy = 48, 64, 80
    if stamp == 2: STAMP(6)
    if t1:
        vAF, vPk = 48, 64
        for kb in range(4): A(f"ds_read_b128 v[{vAF+4*kb}:{vAF+4*kb+3}], v{vA4} offset:{kb*64}")
        A(f"ds_read_b32 v{vT1}, v{vA2} offset:16")
        order = [0, 4, 1, 5, 2, 6, 3, 7]
        def post(t):
            e = order[t]; c = vAcc + 4 * e
            ops = [f"v_add_f32 v{c}, v{c}, v{c+1}", f"v_add_f32 v{c+2}, v{c+2}, v{c+3}", f"v_add_f32 v{c}, v{c}, v{c+2}"]
            if t & 1:
                r = e - 4
                ops += [f"v_cndmask_b32 v{vPk+r}, v{vAcc+4*r}, v{c}, s[68:69]", f"v_bfi_b32 v{vPk+r}, s{sT2}, v{vPk+r}, v{vBy+r}"]
            return ops
        for t in range(8):
            e = order[t]
            fill = post(t - 3) if t >= 3 else []
            if t == 1: fill = ["s_waitcnt lgkmcnt(0)", f"v_lshrrev_b32 v{vBy+2}, v{vSh}, v{vT1}", f"v_lshrrev_b32 v{vBy+3}, 8, v{vBy+2}"]
            if t == 7: fill = post(4) + post(5)
            if t == 6: fill = post(3)
            for kb in range(4):
                if t == 0: A(f"s_waitcnt lgkmcnt({4-kb})")
                c = "0" if kb == 0 else f"v[{vAcc+4*e}:{vAcc+4*e+3}]"
                bb = blocks[kb] + 4 * e
                A(f"v_mfma_f32_16x16x32_bf16 v[{vAcc+4*e}:{vAcc+4*e+3}], v[{vAF+4*kb}:{vAF+4*kb+3}], v[{bb}:{bb+3}], {c}")
                for x in fill[2*kb:2*kb+2]: A(x)
        for x in post(6): A(x)
        nop(3)
        for x in post(7): A(x)
    else:
        A(f"ds_read_b128 v[{vML}:{vML+3}], v{vA2}")
        for w in range(4): A(f"ds_read_b64 v[{vO+2*w}:{vO+2*w+1}], v{vA1} offset:{w*1024}")
        A(f"ds_read_b32 v{vT1}, v{vA2} offset:16")
        A("s_waitcnt lgkmcnt(4)")
        A(f"v_mul_f32 v{vO}, v{vO}, v{vML}"); A(f"v_mul_f32 v{vO+1}, v{vO+1}, v{vML}")
        for w in range(1, 4):
            A(f"s_waitcnt lgkmcnt({4-w})")
            A(f"v_fmac_f32 v{vO}, v{vO+2*w}, v{vML+w}"); A(f"v_fmac_f32 v{vO+1}, v{vO+2*w+1}, v{vML+w}")
        A(f"v_cvt_pk_bf16_f32 v{vO}, v{vO}, v{vO+1}")
        A(f"ds_write_b32 v{vA3}, v{vO}")
        A("s_waitcnt lgkmcnt(0)")
        vAF = 48
        for kb in range(4): A(f"ds_read_b128 v[{vAF+4*kb}:{vAF+4*kb+3}], v{vA4} offset:{kb*64}")
        A(f"v_lshrrev_b32 v{vBy+2}, v{vSh}, v{vT1}")
        A(f"v_lshrrev_b32 v{vBy+3}, 8, v{vBy+2}")
        for kb in range(4):
            A(f"s_waitcnt lgkmcnt({3-kb})")
            for e in range(8):
                c = "0" if kb == 0 else f"v[{vAcc+4*e}:{vAcc+4*e+3}]"
                bb = blocks[kb] + 4 * e
                ee = [0, 4, 1, 5, 2, 6, 3, 7][e] if kb == 3 else e
                c = "0" if kb == 0 else f"v[{vAcc+4*ee}:{vAcc+4*ee+3}]"
                bb = blocks[kb] + 4 * ee
                A(f"v_mfma_f32_16x16x32_bf16 v[{vAcc+4*ee}:{vAcc+4*ee+3}], v[{vAF+4*kb}:{vAF+4*kb+3}], v[{bb}:{bb+3}], {c}")
        vPk = 64
        nop(2)
        for r in range(4):
            A(f"v_cndmask_b32 v{vPk+r}, v{vAcc+4*r}, v{vAcc+16+4*r}, s[68:69]")
            A(f"v_bfi_b32 v{vPk+r}, s{sT2}, v{vPk+r}, v{vBy+r}")
    if not pad: A("s_mov_b32 exec_hi, 0")
    A(f"buffer_store_dwordx4 v[{vPk}:{vPk+3}], v{vPub}, s[32:35], 0 offen {pubf}")
    if stamp == 2: STAMP(7)
    if stamp:
        A("s_mov_b64 exec, -1")
        A("s_waitcnt vmcnt(0)")
        STAMP(5)
        dump_stamps()
    A("s_endpgm")

    def wait_progress(label, base, spread, slp=32):
        if spread == 2:
            A(f"s_lshl_b32 s{sT1}, s{sB}, 3"); A(f"s_add_u32 s{sT1}, s{sT1}, {base}"); A(f"s_lshl_b32 s{sT1}, s{sT1}, 15")
        elif spread:
            A(f"s_lshr_b32 s{sT1}, s2, 3"); A(f"s_add_u32 s{sT1}, s{sT1}, {base}"); A(f"s_lshl_b32 s{sT1}, s{sT1}, 15")
        else:
            A(f"s_mov_b32 s{sT1}, {base << 15}")
        A(f"v_mov_b32 v{vT0}, {PR}")
        A(f"s_mov_b32 s{sCnt}, {spin}")
        LB(label + "_w")
        A(f"ds_read_b32 v{vT1}, v{vT0}")
        A("s_waitcnt lgkmcnt(0)")
        A(f"v_readfirstlane_b32 s{sT0}, v{vT1}"); nop(2)
        A(f"s_cmp_ge_u32 s{sT0}, s{sT1}"); A(f"s_cbranch_scc1 {label}_go")
        A(f"s_sleep {slp}")
        A(f"s_sub_u32 s{sCnt}, s{sCnt}, 1"); A(f"s_cmp_lg_u32 s{sCnt}, 0"); A(f"s_cbranch_scc1 {label}_w")
        LB(label + "_go")
    def wipe(label, vaddr, vtag, t, ps=16):
        if 'L' in dis: return
        A(f"buffer_load_dwordx2 v[{t}:{t+1}], v{vaddr}, s[44:47], 0 offen sc1 nt")
        A(f"buffer_load_dwordx2 v[{t+2}:{t+3}], v{vaddr}, s[44:47], 0 offen offset:{ps} sc1 nt")
        A(f"s_mov_b32 s{sT1}, 0x0c0c0400")
        A(f"v_not_b32 v{t+4}, v{vtag}"); A(f"v_mov_b32 v{t+5}, 0")
        A("s_waitcnt vmcnt(0)")
        for i in range(2):
            A(f"v_perm_b32 v{t+2*i}, v{t+2*i+1}, v{t+2*i}, s{sT1}")
            A(f"v_cmp_eq_u32 vcc, v{vtag}, v{t+2*i}")
            A(f"s_cbranch_vccz {label}{i}")
            A("s_mov_b64 exec, vcc")
            A(f"buffer_store_dwordx2 v[{t+4}:{t+5}], v{vaddr}, s[44:47], 0 offen offset:{ps*i} {sflags}")
            A("s_mov_b64 exec, -1")
            A("s_waitcnt vmcnt(0)")
            LB(f"{label}{i}")

    LB("L_sum")
    A(f"v_and_b32 v{vT0}, 3, v{vLane}"); A(f"v_lshlrev_b32 v{vT0}, 8, v{vT0}"); A(f"v_add_u32 v{vT0}, {PR}, v{vT0}")
    A(f"s_mov_b32 s{sCnt}, {spin}")
    A(f"s_mov_b32 s{sT1}, {64 << 15}")
    LB("L_sw")
    A(f"ds_read_b32 v{vT1}, v{vT0}")
    A("s_waitcnt lgkmcnt(0)")
    A(f"v_cmp_gt_u32 vcc, s{sT1}, v{vT1}")
    A("s_cbranch_vccz L_sgo")
    A("s_sleep 32")
    A(f"s_sub_u32 s{sCnt}, s{sCnt}, 1"); A(f"s_cmp_lg_u32 s{sCnt}, 0"); A("s_cbranch_scc1 L_sw")
    LB("L_sgo")
    A(f"v_mov_b32 v{vT0}, {MW}")
    A(f"ds_read_b128 v[4:7], v{vT0}")
    A(f"v_mul_u32_u24 v{vT1}, {GS}, v{vG16}"); A(f"v_lshl_add_u32 v{vT1}, v{vN}, 6, v{vT1}"); A(f"v_add_u32 v{vT1}, {SC}, v{vT1}")
    for w in range(4):
        if w == 2: A("s_waitcnt lgkmcnt(0)")
        for c in range(4):
            A(f"ds_read_b128 v[{32+16*w+4*c}:{35+16*w+4*c}], v{vT1} offset:{w*4*GS+16*c}")
    A("v_max3_f32 v8, v4, v5, v6"); A("v_max_f32 v8, v8, v7")
    A("v_mov_b32 v9, 0")
    A("s_waitcnt lgkmcnt(0)")
    for r in range(64): A(f"v_fma_f32 v{32+r}, v{32+r}, s{sC}, -v8")
    for r in range(64): A(f"v_exp_f32 v{32+r}, v{32+r}")
    for r in range(64): A(f"v_add_f32 v9, v9, v{32+r}")
    nop(2)
    for sh in ["quad_perm:[1,0,3,2]", "quad_perm:[2,3,0,1]", "row_ror:4", "row_ror:8"]:
        A(f"v_add_f32_dpp v9, v9, v9 {sh} {DPPF}"); nop(2)
    A(f"v_add_f32_dpp v9, v9, v9 row_bcast:15 row_mask:0xa bank_mask:0xf"); nop(2)
    A(f"v_add_f32_dpp v9, v9, v9 row_bcast:31 row_mask:0xc bank_mask:0xf"); nop(1)
    A(f"v_readlane_b32 s{sT0}, v9, 63"); nop(2)
    A(f"v_rcp_f32 v9, s{sT0}"); A(f"v_log_f32 v10, s{sT0}")
    for w in range(4): A(f"v_sub_f32 v{4+w}, v{4+w}, v8")
    for w in range(4): A(f"v_exp_f32 v{4+w}, v{4+w}")
    A("v_add_f32 v10, v10, v8")
    for w in range(4): A(f"v_mul_f32 v{4+w}, v{4+w}, v9")
    A(f"v_mov_b32 v{vT0}, {FW}")
    A(f"ds_write_b128 v{vT0}, v[4:7]")
    A("v_mov_b32 v11, 1")
    A(f"ds_write_b64 v{vT0}, v[10:11] offset:16")
    A("s_branch L_join")

    LB("L_wipe")
    A(f"s_lshl_b32 s{sT0}, s{sRow}, {11+pad}")
    A(f"v_lshl_add_u32 v{vT0}, v{vLane}, {5+pad}, s{sT0}")
    A(f"v_mov_b32 v{vT2}, s{sTag}")
    wipe("L_wy", vT0, vT2, vW)
    if 'v' in touch:
        A(f"s_lshl_b32 s{sT0}, s{sRow}, 20")
        srd(36, 8, 9, f"s{sT0}", 64)
        A(f"v_mov_b32 v{vT0}, 0")
        A(f"buffer_load_dword v{vT1}, v{vT0}, s[36:39], 0 offen nt")
    if 'V' in touch:
        A(f"s_lshl_b32 s{sT0}, s{sRow}, 20")
        A(f"s_load_dword s{sT1}, s[8:9], s{sT0}")
    if 'o' in touch:
        srd(40, 24, 25, None, 4096)
        A(f"s_lshl_b32 s{sT0}, s{sRow}, 4"); A(f"v_mov_b32 v{vT0}, s{sT0}")
        A(f"buffer_load_dword v{vT1}, v{vT0}, s[40:43], 0 offen nt")
    if 'O' in touch:
        A(f"s_load_dword s{sT2}, s[24:25], 0")
    if touch: A("s_waitcnt vmcnt(0) lgkmcnt(0)")
    if ctl:
        A(f"s_mul_i32 s{sOff}, s{sTag}, 0x10001")
        for r in range(4): A(f"v_mov_b32 v{vW+r}, s{sOff}")
        if pack:
            A(f"s_lshl_b32 s{sT0}, s{sB}, 1"); A(f"s_add_u32 s{sT0}, s{sT0}, s{sSp}"); A(f"s_lshl_b32 s{sT0}, s{sT0}, 8")
            A(f"s_add_u32 s{sT0}, s{sT0}, {POFF:#x}")
            A(f"v_lshl_add_u32 v{vW+5}, v{vLane}, 2, s{sT0}")
            A(f"s_lshl_b32 s{sT1}, s{sH}, 2"); A(f"s_add_u32 s{sT0}, s{sT0}, s{sT1}"); A(f"v_mov_b32 v{vW+4}, s{sT0}")
        else:
            A(f"s_lshl_b32 s{sT0}, s{sRow}, 7"); A(f"s_add_u32 s{sT0}, s{sT0}, {POFF:#x}")
            A(f"v_lshl_add_u32 v{vW+4}, v{vLane}, 4, s{sT0}")
            A(f"s_and_b32 s{sT0}, s{sRow}, {0xff & ~(2*(PE-1)):#x}")
            if oth: A(f"s_xor_b32 s{sT0}, s{sT0}, {oth}")
            if refm: A(f"s_andn2_b32 s{sT0}, s{sT0}, {refm}")
            A(f"s_lshl_b32 s{sT0}, s{sT0}, 7"); A(f"s_add_u32 s{sT0}, s{sT0}, {POFF:#x}")
            A(f"v_lshl_add_u32 v{vW+5}, v{vLane}, 8, s{sT0}")
            A(f"s_add_u32 s30, s28, s{sT0}"); A("s_addc_u32 s31, s29, 0")
        A(f"v_mov_b32 v{vW+6}, {DU}")
        if CL:
            A(f"s_mul_i32 s89, s{sE}, 0x10001")
            for r in range(4): A(f"v_mov_b32 v{vW+8+r}, s89")
            A(f"s_and_b32 s{sT0}, s2, 7"); A(f"s_lshl_b32 s{sT0}, s{sT0}, 12"); A(f"s_add_u32 s{sT0}, s{sT0}, {POFF:#x}")
            A(f"v_lshl_add_u32 v{vW+13}, v{vLane}, {2 if lpack else 7}, s{sT0}")
            A(f"s_lshr_b32 s{sT1}, s2, 3"); A(f"s_lshl_b32 s{sT1}, s{sT1}, {2 if lpack else 7}"); A(f"s_add_u32 s{sT0}, s{sT0}, s{sT1}")
            A(f"v_lshl_add_u32 v{vW+12}, v{vLane}, 4, s{sT0}")
            if KX:
                XO = POFF + 12 * 32768 - 65536
                A(f"s_and_b32 s{sT0}, s2, 7"); A(f"s_lshl_b32 s{sT0}, s{sT0}, 7"); A(f"s_add_u32 s{sT0}, s{sT0}, {XO:#x}")
                A(f"v_lshl_add_u32 v{vW+14}, v{vLane}, 4, s{sT0}")
                A(f"v_lshlrev_b32 v{vW+15}, 7, v{vLane}"); A(f"v_add_u32 v{vW+15}, {XO:#x}, v{vW+15}")
        A("s_mov_b32 s90, 64")
        if TE is None: A(f"s_mov_b32 s91, {TL}")
        else:
            A(f"s_getreg_b32 s91, hwreg(HW_REG_XCC_ID, 0, 1)"); A("s_cmp_eq_u32 s91, 0"); A(f"s_cselect_b32 s91, {TE}, {TL}")
        for ck, T in enumerate(CKK):
            wait_progress(f"L_kp{ck}", T, 0, cslp)
            A(f"s_mov_b32 s{sT2}, {(9 - ck) * 32768}")
            A("s_mov_b32 exec_hi, 0")
            A(f"buffer_load_dword v{vW+7}, v{vW+13}, s[44:47], s{sT2} offen {llf}")
            A("s_mov_b64 exec, 0xff"); A(f"buffer_store_dwordx4 v[{vW+8}:{vW+11}], v{vW+12}, s[44:47], s{sT2} offen {lsf}")
            A("s_mov_b32 exec_lo, -1")
            A("s_waitcnt vmcnt(1)")
            A(f"v_cmp_eq_u32 vcc, s89, v{vW+7}")
            A("s_mov_b64 exec, -1")
            A(f"s_bcnt1_i32_b64 s{sT0}, vcc")
            A(f"s_sub_i32 s{sT0}, s{sT0}, {TK}"); A(f"s_max_i32 s{sT0}, s{sT0}, 0"); A(f"s_mul_i32 s{sT0}, s{sT0}, {MK}"); A(f"s_lshr_b32 s{sT0}, s{sT0}, {SK}")
            A(f"s_min_u32 s{sT0}, s{sT0}, {NK}")
            A(f"s_sub_i32 s{sT0}, {(64 - T) // 2 - 1}, s{sT0}")
            A(f"v_mov_b32 v{vT1}, s{sT0}")
            A(f"ds_write_b32 v{vW+6}, v{vT1} offset:8")
        for ci, (k, loc) in enumerate(sorted([(k, 0) for k in CK] + [(k, 1) for k in CL])):
            wait_progress(f"L_cp{ci}", 64 + 4 * k, 0, cslp)
            A(f"s_mov_b32 s{sT2}, {ci * 32768}")
            if loc:
                A("s_mov_b32 exec_hi, 0")
                A(f"buffer_load_dword v{vW+7}, v{vW+13}, s[44:47], s{sT2} offen {llf}")
                if lpack:
                    A("s_mov_b64 exec, 1"); A(f"buffer_store_dword v{vW+8}, v{vW+12}, s[44:47], s{sT2} offen {lsf}")
                else:
                    A("s_mov_b64 exec, 0xff"); A(f"buffer_store_dwordx4 v[{vW+8}:{vW+11}], v{vW+12}, s[44:47], s{sT2} offen {lsf}")
                if KX and ci > 0:
                    A(f"s_mov_b32 s{sT1}, {(ci-1)*4096}")
                    A("s_mov_b64 exec, 1")
                    A(f"buffer_load_dwordx2 v[{vW+16}:{vW+17}], v{vW+14}, s[44:47], s{sT1} offen {llf}")
                A("s_mov_b32 exec_lo, -1")
                A("s_waitcnt vmcnt(0)" if KX and ci > 0 else "s_waitcnt vmcnt(1)")
                A(f"v_cmp_eq_u32 vcc, s89, v{vW+7}")
                A("s_mov_b64 exec, -1")
                A(f"s_bcnt1_i32_b64 s{sT0}, vcc")
                if KX and ci > 0:
                    A(f"v_readfirstlane_b32 s92, v{vW+16}"); A(f"v_readfirstlane_b32 s93, v{vW+17}"); nop(2)
                    A("s_cmp_eq_u32 s92, s89"); A("s_cselect_b32 s93, s93, 0")
                    A(f"s_add_i32 s{sT0}, s{sT0}, s93")
                if stamp == 3 and ci < 3: A(f"v_writelane_b32 v{stamp_reg[0]}, s{sT0}, {12+ci}")
                if TS is not None:
                    A(f"s_sub_i32 s{sT1}, {TS}, s{sT0}"); A(f"s_max_i32 s{sT1}, s{sT1}, 0"); A(f"s_lshr_b32 s{sT1}, s{sT1}, {SS}")
                    A(f"s_min_u32 s{sT1}, s{sT1}, {NS}"); A(f"s_sub_i32 s{sT1}, {16 - NE - k - 1}, s{sT1}")
                    A(f"v_mov_b32 v{vT2}, s{sT1}"); A(f"ds_write_b32 v{vW+6}, v{vT2} offset:4")
                A(f"s_sub_i32 s{sT0}, s{sT0}, s91"); A(f"s_max_i32 s{sT0}, s{sT0}, 0"); A(f"s_lshr_b32 s{sT0}, s{sT0}, {SL}")
                A(f"s_min_u32 s{sT0}, s{sT0}, {NL}")
                A(f"s_sub_i32 s{sT0}, {16 - NE - k - 1}, s{sT0}")
                A(f"s_min_i32 s{sT0}, s{sT0}, s90")
                A(f"v_mov_b32 v{vT1}, s{sT0}")
                A(f"ds_write_b32 v{vW+6}, v{vT1}")
                if KX and ci < len(CL) - 1:
                    A("s_cmp_ge_u32 s2, 8"); A(f"s_cbranch_scc1 L_nx{ci}")
                    A(f"s_mov_b32 s{sT1}, {ci*4096}")
                    A("s_mov_b64 exec, 0xff")
                    A(f"buffer_store_dwordx4 v[{vW+8}:{vW+11}], v{vW+14}, s[44:47], s{sT1} offen offset:2048 sc1")
                    if XS: A(f"s_sleep {XS}")
                    A(f"buffer_load_dword v{vW+7}, v{vW+15}, s[44:47], s{sT1} offen offset:2048 sc1")
                    A("s_waitcnt vmcnt(0)")
                    A(f"v_cmp_eq_u32 vcc, s89, v{vW+7}")
                    A(f"s_bcnt1_i32_b64 s{sT0}, vcc")
                    A(f"s_sub_i32 s{sT0}, s{sT0}, {XC+1}"); A(f"s_mul_i32 s{sT0}, s{sT0}, {KX}")
                    A(f"v_mov_b32 v{vW+16}, s89"); A(f"v_mov_b32 v{vW+17}, s{sT0}"); A(f"v_mov_b32 v{vW+18}, s89"); A(f"v_mov_b32 v{vW+19}, s{sT0}")
                    A(f"buffer_store_dwordx4 v[{vW+16}:{vW+19}], v{vW+14}, s[44:47], s{sT1} offen {lsf}")
                    A("s_mov_b64 exec, -1")
                    A("s_waitcnt vmcnt(0)")
                    LB(f"L_nx{ci}")
                continue
            pm = (1 << PE) - 1
            if rd == 's':
                for p in range(PE): A(f"s_load_dword s{80+p}, s[30:31], {ci*32768 + p*256:#x}")
                A("s_mov_b64 exec, 0xff")
                A(f"buffer_store_dwordx4 v[{vW}:{vW+3}], v{vW+4}, s[44:47], s{sT2} offen {sf}")
                A("s_mov_b64 exec, -1")
                A(f"s_mov_b32 s{sT0}, 0")
                A("s_waitcnt lgkmcnt(0)")
                for p in range(PE):
                    A(f"s_cmp_eq_u32 s{80+p}, s{sOff}"); A(f"s_addc_u32 s{sT0}, s{sT0}, 0")
            else:
                A("s_mov_b32 exec_hi, 0"); A(f"s_mov_b32 exec_lo, {pm:#x}")
                if 'Y' not in dis: A(f"buffer_load_dword v{vW+7}, v{vW+5}, s[44:47], s{sT2} offen {cf}")
                if pack:
                    A("s_mov_b64 exec, 1")
                    A(f"buffer_store_dword v{vW}, v{vW+4}, s[44:47], s{sT2} offen sc1")
                else:
                    if refm:
                        A(f"s_and_b32 s{sT0}, s{sRow}, {refm}"); A(f"s_cbranch_scc1 L_np{ci}")
                    A("s_mov_b64 exec, 0xff")
                    if 'X' not in dis: A(f"buffer_store_dwordx4 v[{vW}:{vW+3}], v{vW+4}, s[44:47], s{sT2} offen {sf}")
                    LB(f"L_np{ci}")
                A(f"s_mov_b32 exec_lo, {pm:#x}")
                A("s_waitcnt vmcnt(0)" if refm or 'X' in dis else "s_waitcnt vmcnt(1)")
                A(f"v_cmp_eq_u32 vcc, s{sOff}, v{vW+7}")
                A("s_mov_b64 exec, -1")
                A(f"s_bcnt1_i32_b64 s{sT0}, vcc")
            if stamp == 3 and ci < 3: A(f"v_writelane_b32 v{stamp_reg[0]}, s{sT0}, {12+ci}")
            A(f"s_sub_i32 s{sT0}, s{sT0}, {T0}"); A(f"s_max_i32 s{sT0}, s{sT0}, 0"); A(f"s_mul_i32 s{sT0}, s{sT0}, {MUL}"); A(f"s_lshr_b32 s{sT0}, s{sT0}, {SH}")
            A(f"s_min_u32 s{sT0}, s{sT0}, {NMAX}")
            A(f"s_sub_i32 s{sT0}, {16 - NE - k - 1}, s{sT0}")
            A(f"s_mov_b32 s90, s{sT0}")
            A(f"v_mov_b32 v{vT1}, s{sT0}")
            A(f"ds_write_b32 v{vW+6}, v{vT1}")
    A("s_branch L_join")

    LB("L_gate")
    if smap:
        A(f"s_and_b32 s{sCo}, s2, 7"); A(f"s_lshl_b32 s{sCo}, s{sCo}, 3"); A(f"s_lshr_b32 s89, s2, 6"); A("s_lshl_b32 s89, s89, 1")
        A(f"s_add_u32 s{sCo}, s{sCo}, s89"); A(f"s_add_u32 s{sCo}, s{sCo}, s{sSp}"); A(f"s_lshl_b32 s89, s{sB}, 6"); A(f"s_add_u32 s{sCo}, s{sCo}, s89")
    else:
        A(f"s_mov_b32 s{sCo}, s{sRow}")
    if 'G' in dis: A("s_branch L_join")
    srd(36, 22, 23, None, 1024)
    A(f"v_lshlrev_b32 v{vT0}, 4, v{vLane}")
    A(f"s_lshl_b32 s{sT0}, s{sB}, 10")
    A(f"buffer_load_dwordx4 v[{vW}:{vW+3}], v{vT0}, s[48:51], s{sT0} offen {xf}")
    A(f"buffer_load_dwordx4 v[{vW+4}:{vW+7}], v{vT0}, s[36:39], 0 offen {xf}")
    A("s_waitcnt vmcnt(0)")
    vGs = vW + 16
    A(f"v_mov_b32 v{vGs}, 0")
    for r in range(4):
        for hi in range(2):
            if hi:
                A(f"v_and_b32 v{vT0}, 0xffff0000, v{vW+r}"); A(f"v_and_b32 v{vT1}, 0xffff0000, v{vW+4+r}")
            else:
                A(f"v_lshlrev_b32 v{vT0}, 16, v{vW+r}"); A(f"v_lshlrev_b32 v{vT1}, 16, v{vW+4+r}")
            A(f"v_mul_f32 v{vT0}, v{vT0}, v{vT1}")
            if mimic: round_bf16(vT0)
            A(f"v_add_f32 v{vGs}, v{vGs}, v{vT0}")
    nop(2)
    for sh in ["quad_perm:[1,0,3,2]", "quad_perm:[2,3,0,1]", "row_ror:4", "row_ror:8"]:
        A(f"v_add_f32_dpp v{vGs}, v{vGs}, v{vGs} {sh} {DPPF}"); nop(2)
    A(f"v_add_f32_dpp v{vGs}, v{vGs}, v{vGs} row_bcast:15 row_mask:0xa bank_mask:0xf"); nop(2)
    A(f"v_add_f32_dpp v{vGs}, v{vGs}, v{vGs} row_bcast:31 row_mask:0xc bank_mask:0xf"); nop(1)
    A(f"v_readlane_b32 s{sT0}, v{vGs}, 63"); nop(2)
    A(f"v_mov_b32 v{vGs}, s{sT0}")
    if mimic: round_bf16(vGs)
    A(f"v_mul_f32 v{vGs}, {f2u(-LOG2E):#x}, v{vGs}")
    A(f"v_exp_f32 v{vGs}, v{vGs}"); nop(1)
    A(f"v_add_f32 v{vGs}, 1.0, v{vGs}")
    A(f"v_rcp_f32 v{vGs}, v{vGs}"); nop(1)
    if mimic: round_bf16(vGs)
    A(f"v_bfe_u32 v{vT0}, v{vLane}, 5, 1"); A(f"v_bfe_u32 v{vT1}, v{vLane}, 4, 1"); A(f"v_bfe_u32 v{vT2}, v{vLane}, 3, 1")
    A(f"v_lshl_add_u32 v{vT0}, v{vT1}, 1, v{vT0}"); A(f"v_lshl_add_u32 v{vT0}, v{vT2}, 2, v{vT0}")
    A(f"s_lshl_b32 s{sT0}, s{sCo}, 4")
    A(f"v_lshl_add_u32 v{vGs+3}, v{vT0}, 1, s{sT0}")
    wait_progress("L_ck", gate_tile, gsp, gslp)
    A(f"s_bfe_u32 s{sT0}, s{sCo}, 0x20004"); A(f"s_lshl_b32 s{sT0}, s{sT0}, 11")
    A(f"s_lshl_b32 s{sT1}, s{sB}, 8"); A(f"s_add_u32 s{sT0}, s{sT0}, s{sT1}")
    A(f"s_and_b32 s{sT1}, s{sCo}, 15"); A(f"s_lshl_b32 s{sT1}, s{sT1}, 4"); A(f"s_add_u32 s{sT0}, s{sT0}, s{sT1}")
    A(f"s_add_u32 s{sT0}, s{sT0}, {F2OFF:#x}")
    A(f"v_lshl_add_u32 v{vT0}, v{vLane}, 13, s{sT0}")
    for e in range(8): A(f"v_mov_b32 v{vW+e}, 0")
    A(f"s_mov_b32 s{sT1}, 0x0c0c0400"); A(f"s_mul_i32 s{sOff}, s{sTag}, 0x10001")
    A(f"s_mov_b32 s{sCnt}, {spin}")
    A("s_mov_b64 exec, 0x7ff")
    LB("L_c2")
    if 'R' in dis: A("s_branch L_c2_ok")
    A(f"buffer_load_dwordx4 v[{vW}:{vW+3}], v{vT0}, s[44:47], 0 offen {lflags}")
    A(f"buffer_load_dwordx4 v[{vW+4}:{vW+7}], v{vT0}, s[44:47], 0 offen offset:1024 {lflags}")
    A("s_waitcnt vmcnt(0)")
    A(f"v_perm_b32 v{vT1}, v{vW+1}, v{vW}, s{sT1}")
    A(f"v_perm_b32 v{vT2}, v{vW+5}, v{vW+4}, s{sT1}")
    A(f"v_perm_b32 v{vT1}, v{vT2}, v{vT1}, s{sSelLo}")
    A(f"v_cmp_ne_u32 vcc, s{sOff}, v{vT1}")
    A("s_cbranch_vccz L_c2_ok" if 'f' not in dis and 'S' not in dis else "s_branch L_c2_ok")
    A("s_mov_b64 exec, vcc")
    A("s_sleep 64")
    A(f"s_sub_u32 s{sCnt}, s{sCnt}, 1"); A(f"s_cmp_lg_u32 s{sCnt}, 0"); A("s_cbranch_scc1 L_c2")
    LB("L_c2_ok")
    A("s_mov_b64 exec, -1")
    for e in (0, 1, 4, 5): A(f"v_and_b32 v{vW+e}, 0xffffff00, v{vW+e}")
    reduce8(vW)
    A(f"v_sub_f32 v{vT0}, 1.0, v{vGs}")
    if mimic:
        round_bf16(vW); round_bf16(vT0)
    A(f"v_mul_f32 v{vGs+1}, v{vW}, v{vT0}")
    if mimic: round_bf16(vGs + 1)
    A(f"v_lshlrev_b32 v{vT1}, 4, v{vLane}"); A(f"v_add_u32 v{vT1}, {GB}, v{vT1}")
    A(f"ds_write_b128 v{vT1}, v[{vGs}:{vGs+3}]")
    A("s_branch L_join")

    LB("L_ffn")
    if 'f' in dis: A("s_branch L_join")
    fAcc, fPm, fLd, fA, fOut = 32, 64, 224, 2, 8
    fVo, fLw, fLr, fDst, fTag = 18, 19, 20, 24, 25
    sG, sQ = 68, 69
    A("s_cmp_lt_u32 s2, 88"); A("s_cbranch_scc1 L_fgo")
    A("s_cmp_lt_u32 s2, 128"); A("s_cbranch_scc1 L_join")
    A("s_cmp_ge_u32 s2, 172"); A("s_cbranch_scc1 L_join")
    LB("L_fgo")
    A(f"v_mov_b32 v{fTag}, s{sE}")
    for b_ in range(1, 4):
        A(f"v_cmp_eq_u32 vcc, {b_}, v{vG16}"); A(f"v_mov_b32 v{vT0}, s{sE+b_}"); nop(1)
        A(f"v_cndmask_b32 v{fTag}, v{fTag}, v{vT0}, vcc")
    AIM = 4096
    A(f"v_lshlrev_b32 v{fLw}, 4, v{vLane}"); A(f"v_add_u32 v{fLw}, {AIM}, v{fLw}")
    A(f"v_lshrrev_b32 v{vT0}, 2, v{vN}"); A(f"v_lshlrev_b32 v{vT0}, 8, v{vT0}")
    A(f"v_lshl_add_u32 v{fLr}, v{vG16}, 4, v{vT0}"); A(f"v_add_u32 v{fLr}, {AIM}, v{fLr}")
    A(f"s_and_b32 s{sQ}, s2, 3")
    A("s_cmp_ge_u32 s2, 128"); A("s_cbranch_scc1 L_fdown")
    def gemv(label, rs, cnt):
        for r in range(32): A(f"v_mov_b32 v{fAcc+r}, 0")
        if isinstance(cnt, int): A(f"s_mov_b32 s{sCnt}, {cnt}")
        LB(label)
        A("s_waitcnt lgkmcnt(0)")
        A(f"ds_read_b128 v[{fA}:{fA+3}], v{fLr}")
        for j in range(8):
            if j >= WF: A(f"s_waitcnt vmcnt({WF-1})")
            A(f"s_mov_b32 s{sOff}, {j*rs}")
            A(f"buffer_load_dwordx4 v[{fLd+4*j}:{fLd+4*j+3}], v{fVo}, s[32:35], s{sOff} offen nt")
        A(f"v_add_u32 v{fVo}, {32*rs}, v{fVo}")
        A(f"v_add_u32 v{fLr}, 64, v{fLr}")
        A("s_waitcnt vmcnt(0) lgkmcnt(0)")
        perm_block(fLd, fPm)
        nop(2)
        for e in range(8):
            A(f"v_mfma_f32_16x16x32_bf16 v[{fAcc+4*e}:{fAcc+4*e+3}], v[{fA}:{fA+3}], v[{fPm+4*e}:{fPm+4*e+3}], v[{fAcc+4*e}:{fAcc+4*e+3}]")
        A(f"s_sub_u32 s{sCnt}, s{sCnt}, 1"); A(f"s_cmp_lg_u32 s{sCnt}, 0"); A(f"s_cbranch_scc1 {label}")
    A(f"s_lshr_b32 s{sG}, s2, 3")
    A(f"v_lshlrev_b32 v{vT0}, 10, v{vG16}"); A(f"v_lshl_add_u32 v{vT0}, v{vN}, 4, v{vT0}")
    A(f"s_lshl_b32 s{sT0}, s{sQ}, 8")
    A(f"buffer_load_dwordx4 v[{fA}:{fA+3}], v{vT0}, s[48:51], s{sT0} offen {xf}")
    A(f"s_lshl_b32 s{sT0}, s2, 11"); A(f"s_add_u32 s{sT0}, s{sT0}, {F1OFF:#x}")
    A(f"v_lshl_add_u32 v{fDst}, v{vLane}, 4, s{sT0}")
    wipe("L_w1", fDst, fTag, vW, 1024)
    A("s_waitcnt vmcnt(0)")
    A(f"ds_write_b128 v{fLw}, v[{fA}:{fA+3}]")
    A("s_bitcmp1_b32 s2, 2")
    A("s_cselect_b32 s32, s18, s16"); A("s_cselect_b32 s33, s19, s17")
    A(f"s_mov_b32 s34, {0 if 'W' in dis else 512*2752}"); A("s_mov_b32 s35, 0x20000")
    A(f"s_cmp_eq_u32 s{sG}, 10"); A(f"s_cselect_b32 s{sT0}, 11, 15")
    A(f"v_min_u32 v{vT0}, s{sT0}, v{vN}")
    A(f"s_mul_i32 s{sT0}, s{sQ}, {128*2752}"); A(f"s_lshl_b32 s{sT1}, s{sG}, 8"); A(f"s_add_u32 s{sT0}, s{sT0}, s{sT1}")
    A(f"v_lshl_add_u32 v{vT0}, v{vT0}, 4, s{sT0}")
    A(f"v_mul_u32_u24 v{vT1}, {8*2752}, v{vG16}"); A(f"v_add_u32 v{fVo}, v{vT0}, v{vT1}")
    gemv("L_f1", 2752, 4)
    A("s_branch L_fout")
    LB("L_fdown")
    A(f"s_sub_u32 s{sG}, s2, 128"); A(f"s_lshr_b32 s{sG}, s{sG}, 2")
    A(f"s_lshl_b32 s{sT0}, s{sG}, 13"); A(f"s_lshl_b32 s{sT1}, s{sQ}, 11"); A(f"s_add_u32 s{sT0}, s{sT0}, s{sT1}")
    A(f"s_add_u32 s{sT0}, s{sT0}, {F2OFF:#x}")
    A(f"v_lshl_add_u32 v{fDst}, v{vLane}, 4, s{sT0}")
    wipe("L_w2", fDst, fTag, vW, 1024)
    wait_progress("L_f2w", f2_tile, 0)
    A(f"s_lshl_b32 s{sT0}, s{sG}, 14"); A(f"s_add_u32 s{sT0}, s{sT0}, {F1OFF:#x}")
    A(f"v_lshl_add_u32 v{fVo}, v{vLane}, 4, s{sT0}")
    A(f"v_mul_u32_u24 v26, 0x10001, v{fTag}")
    A(f"s_mov_b32 s{sT1}, 0x0c0c0400")
    A(f"s_mov_b32 s{sCnt}, {spin}")
    LB("L_f2p")
    if 'R' in dis: A("s_branch L_f2ok")
    for u in range(8):
        A(f"s_mov_b32 s{sOff}, {u*2048}")
        A(f"buffer_load_dwordx4 v[{32+8*u}:{35+8*u}], v{fVo}, s[44:47], s{sOff} offen {lflags}")
        A(f"buffer_load_dwordx4 v[{36+8*u}:{39+8*u}], v{fVo}, s[44:47], s{sOff} offen offset:1024 {lflags}")
    A(f"v_mov_b32 v27, 0")
    A("s_waitcnt vmcnt(0)")
    for u in range(8):
        r = 32 + 8 * u
        A(f"v_perm_b32 v{vT1}, v{r+1}, v{r}, s{sT1}")
        A(f"v_perm_b32 v{vT2}, v{r+5}, v{r+4}, s{sT1}")
        A(f"v_perm_b32 v{vT1}, v{vT2}, v{vT1}, s{sSelLo}")
        A(f"v_xor_b32 v{vT1}, v{vT1}, v26"); A(f"v_or_b32 v27, v27, v{vT1}")
    A("v_cmp_ne_u32 vcc, 0, v27")
    A("s_cbranch_vccz L_f2ok" if 'S' not in dis else "s_branch L_f2ok")
    A("s_sleep 64")
    A(f"s_sub_u32 s{sCnt}, s{sCnt}, 1"); A(f"s_cmp_lg_u32 s{sCnt}, 0"); A("s_cbranch_scc1 L_f2p")
    LB("L_f2ok")
    for u in range(8):
        for e in (0, 1, 4, 5): A(f"v_and_b32 v{32+8*u+e}, 0xffffff00, v{32+8*u+e}")
    for m in range(2):
        r = 32 + m * 32
        for e in range(8):
            A(f"v_add_f32 v{r+e}, v{r+e}, v{r+8+e}"); A(f"v_add_f32 v{r+16+e}, v{r+16+e}, v{r+24+e}")
            A(f"v_add_f32 v{r+e}, v{r+e}, v{r+16+e}")
    for e in range(8):
        g_, u_ = 32 + e, 64 + e
        if mimic: round_bf16(g_); round_bf16(u_)
        A(f"v_mul_f32 v{vT0}, {f2u(-LOG2E):#x}, v{g_}")
        A(f"v_exp_f32 v{vT0}, v{vT0}"); nop(1)
        A(f"v_add_f32 v{vT0}, 1.0, v{vT0}")
        A(f"v_rcp_f32 v{vT0}, v{vT0}"); nop(1)
        A(f"v_mul_f32 v{g_}, v{g_}, v{vT0}")
        if mimic: round_bf16(g_)
        A(f"v_mul_f32 v{g_}, v{g_}, v{u_}")
    for r in range(4): A(f"v_cvt_pk_bf16_f32 v{fA+r}, v{32+2*r}, v{33+2*r}")
    A(f"ds_write_b128 v{fLw}, v[{fA}:{fA+3}]")
    srd(32, 20, 21, None, 0 if 'W' in dis or 'D' in dis else 1376 * 1024)
    A(f"s_lshl_b32 s{sT0}, s{sG}, 17"); A(f"s_lshl_b32 s{sT1}, s{sQ}, 8"); A(f"s_add_u32 s{sT0}, s{sT0}, s{sT1}")
    A(f"v_lshl_add_u32 v{vT0}, v{vN}, 4, s{sT0}"); A(f"v_lshl_add_u32 v{fVo}, v{vG16}, 13, v{vT0}")
    A(f"s_cmp_eq_u32 s{sG}, 10"); A(f"s_cselect_b32 s{sCnt}, 3, 4")
    gemv("L_f2", 1024, None)
    LB("L_fout")
    A(f"v_lshrrev_b32 v{vT0}, 8, v{fTag}")
    A(f"s_mov_b32 s{sT2}, 0xffffff00")
    nop(6)
    for e in range(8):
        if e & 2: A(f"v_mov_b32 v{fOut+e}, v{fAcc+4*e}")
        else: A(f"v_bfi_b32 v{fOut+e}, s{sT2}, v{fAcc+4*e}, v{vT0 if e & 1 else fTag}")
    if 'S' not in dis:
        A(f"buffer_store_dwordx4 v[{fOut}:{fOut+3}], v{fDst}, s[44:47], 0 offen {sflags}")
        A(f"buffer_store_dwordx4 v[{fOut+4}:{fOut+7}], v{fDst}, s[44:47], 0 offen offset:1024 {sflags}")
    if stamp:
        A("s_waitcnt vmcnt(0)")
        STAMP(6)
    A("s_branch L_join")

    LB("L_end")
    A("s_endpgm")
    L.append('.section .rodata,"a"'); L.append(".p2align 6"); L.append(f".amdhsa_kernel {NAME}_kernel")
    L.append("  .amdhsa_next_free_vgpr 256"); L.append("  .amdhsa_next_free_sgpr 96"); L.append("  .amdhsa_accum_offset 256")
    L.append("  .amdhsa_group_segment_fixed_size 0"); L.append("  .amdhsa_kernarg_size 104"); L.append("  .amdhsa_user_sgpr_count 2")
    L.append("  .amdhsa_user_sgpr_kernarg_segment_ptr 1"); L.append("  .amdhsa_system_sgpr_workgroup_id_x 1"); L.append(".end_amdhsa_kernel")
    return "\n".join(L) + "\n"

def emit(cfgs):
    import subprocess
    ok = []
    for c in cfgs:
        n = "k7_" + "_".join(f"{k}{str(v).replace(' ','').replace('(','').replace(')','').replace(',','-')}" for k, v in c.items())
        open(f"dev/{n}.s", "w").write(gen(**c)); ok.append(n)
        r = subprocess.run(["clang", "-x", "assembler", "-target", "amdgcn-amd-amdhsa", "-mcpu=gfx950", "-c", f"dev/{n}.s", "-o", "x.o"], capture_output=True, text=True)
        assert r.returncode == 0, r.stderr
    print(" ".join(f"dev/{n}.s" for n in ok))

if __name__ == "__main__":
    emit(eval(sys.argv[1]))
```
